```python
import torch

def _softmax(x, axis=-1):
    return torch.softmax(x, dim=axis)
def _gelu(x):
    return torch.nn.functional.gelu(x, approximate="tanh")
def _silu(x):
    return torch.nn.functional.silu(x)
def _sigmoid(x):
    return torch.sigmoid(x)
def _layernorm(x, axis=-1, eps=1e-5):
    m = x.mean(dim=axis, keepdim=True)
    v = x.var(dim=axis, keepdim=True, unbiased=False)
    return (x - m) / torch.sqrt(v + eps)
def _scatter_add(tgt, idx, src, axis=0):
    return tgt.clone().index_add_(axis, idx, src)
def _segment_sum(src, seg, n):
    out = torch.zeros((n,) + src.shape[1:], dtype=src.dtype)
    return out.index_add_(0, seg, src)
def _pad(x, pw):
    flat = tuple(v for pair in reversed(pw) for v in pair)
    return torch.nn.functional.pad(x, flat)

kernel_name = 'recurrent_scan__sliding_block_cached__mixer_channel_mlp__decode'

def setup_inputs():

    _w = (lambda a: (lambda t: t.to(torch.bfloat16) if t.is_floating_point() else t)(torch.as_tensor(a)))
    def _A_setup():
        B, Sq, D = 4, 1, 512
        Hq, Hkv, Sk, Dh = 32, 8, 8192, 128
        assert Hq % Hkv == 0, (Hq, Hkv)
        return {
            "x": _w((lambda *s: torch.randn(*s, dtype=torch.bfloat16) * 0.05)(B, Sq, D)),
            "k_cache": _w((lambda *s: torch.randn(*s, dtype=torch.bfloat16) * 3.2)(B, Hkv, Sk, Dh)),
            "v_cache": _w((lambda *s: torch.randn(*s, dtype=torch.bfloat16) * 3.2)(B, Hkv, Sk, Dh)),
            "wq": _w((lambda *s: torch.randn(*s, dtype=torch.bfloat16) * 3.2)(D, Hq * Dh) * (D ** -0.5)),
            "wo": _w((lambda *s: torch.randn(*s, dtype=torch.bfloat16) * 3.2)(Hq * Dh, D) * ((Hq * Dh) ** -0.5)),
        }
    _A_in = _A_setup()

    def _B_setup():
        B, S, D, F = 4, 1, 512, 1792
        return {
            "x": _w((lambda *s: torch.randn(*s, dtype=torch.bfloat16) * 0.05)(B, S, D)),
            "w1": _w((lambda *s: torch.randn(*s, dtype=torch.bfloat16) * 3.2)(D, F) * (D ** -0.5)),
            "b1": _w((lambda *s: torch.randn(*s, dtype=torch.bfloat16) * 3.2)(F)),
            "w2": _w((lambda *s: torch.randn(*s, dtype=torch.bfloat16) * 3.2)(F, D) * (F ** -0.5)),
            "b2": _w((lambda *s: torch.randn(*s, dtype=torch.bfloat16) * 3.2)(D)),
        }
    _B_in = _B_setup()

    return {
        "A_x": _A_in["x"],
        "A_k_cache": _A_in["k_cache"],
        "A_v_cache": _A_in["v_cache"],
        "A_wq": _A_in["wq"],
        "A_wo": _A_in["wo"],
        "B_x": _B_in["x"],
        "B_w1": _B_in["w1"],
        "B_b1": _B_in["b1"],
        "B_w2": _B_in["w2"],
        "B_b2": _B_in["b2"],
    }

def reference(A_x, A_k_cache, A_v_cache, A_wq, A_wo, B_x, B_w1, B_b1, B_w2, B_b2):
    def _A_ref(x, k_cache, v_cache, wq, wo):
        B, Sq, D = x.shape
        Hq, Dh = 32, 128
        Hkv, Sk = k_cache.shape[1], k_cache.shape[2]
        W = min(4096, max(256, Sk // 4))
        rep = Hq // Hkv
        q = (lambda x, *d: x.permute(*d))((x @ wq).reshape(B, Sq, Hq, Dh), 0, 2, 1, 3)
        k = (lambda x, n, axis: torch.repeat_interleave(x, n, dim=axis))(k_cache[:, :, Sk - W:, :], rep, axis=1)
        v = (lambda x, n, axis: torch.repeat_interleave(x, n, dim=axis))(v_cache[:, :, Sk - W:, :], rep, axis=1)
        scores = torch.einsum("bhqd,bhkd->bhqk", q, k) * (Dh ** -0.5)
        p = _softmax(scores, axis=-1)
        o = torch.einsum("bhqk,bhkd->bhqd", p, v)
        return (lambda x, *d: x.permute(*d))(o, 0, 2, 1, 3).reshape(B, Sq, Hq * Dh) @ wo

    def _B_ref(x, w1, b1, w2, b2):
        y = _layernorm(x, axis=-1)
        h = _gelu(torch.einsum("bsd,df->bsf", y, w1) + b1)
        return torch.einsum("bsf,fd->bsd", h, w2) + b2

    x = A_x
    xn = _layernorm(x, axis=-1)
    s = _A_ref(xn, A_k_cache, A_v_cache, A_wq, A_wo)
    g = _silu(_B_ref(xn, B_w1, B_b1, B_w2, B_b2))
    return x + s * g
```

```python
import re

def regs_of(op):
    op = op.strip()
    out = set()
    op = op.replace("-", "").replace("abs(", "").replace(")", "").replace("|", "")
    m = re.fullmatch(r"([vsa])(\d+)", op)
    if m: out.add((m.group(1), int(m.group(2)))); return out
    m = re.fullmatch(r"([vsa])\[(\d+):(\d+)\]", op)
    if m:
        for i in range(int(m.group(2)), int(m.group(3)) + 1): out.add((m.group(1), i))
        return out
    if op in ("vcc", "vcc_lo", "vcc_hi"): out.add(("vcc", 0))
    elif op in ("exec", "exec_lo", "exec_hi"): out.add(("exec", 0))
    elif op == "m0": out.add(("m0", 0))
    return out

TRANS = ("v_exp_f32", "v_log_f32", "v_rcp_f32", "v_rsq_f32", "v_sqrt_f32", "v_sin_f32", "v_cos_f32")

class Emit:
    def __init__(self):
        self.lines = []
        self.hist = []
    def raw(self, s):
        self.lines.append(s)
    def comment(self, s):
        self.lines.append("    ; " + s)
    def label(self, name):
        self.lines.append(name + ":")
        self.hist.append(dict(kind="label", writes=set(), reads=set(), srcC=set(), slots=0))
    def _dist(self, idx):
        return sum(h["slots"] for h in self.hist[idx + 1:])
    def I(self, text):
        text = text.strip()
        mn, _, rest = text.partition(" ")
        ops = []
        cur = ""; depth = 0
        for ch in rest:
            if ch == "[": depth += 1
            if ch == "]": depth -= 1
            if ch == "," and depth == 0: ops.append(cur.strip()); cur = ""
            else: cur += ch
        if cur.strip(): ops.append(cur.strip())
        mods = ""
        if ops:
            parts = ops[-1].split(" ", 1)
            ops[-1] = parts[0]
            mods = parts[1] if len(parts) > 1 else ""
        kind = "other"; writes = set(); reads = set(); srcC = set(); slots = 1
        isdpp = "_dpp" in mn or "quad_perm" in mods or "row_" in mods
        if mn == "s_nop":
            slots = int(ops[0]) + 1; kind = "nop"
        elif mn.startswith("v_mfma"):
            kind = "mfma"; writes = regs_of(ops[0]); reads = regs_of(ops[1]) | regs_of(ops[2]); srcC = regs_of(ops[3])
        elif mn.startswith("v_cmp"):
            kind = "valu"; writes = regs_of(ops[0]); reads = set().union(*[regs_of(o) for o in ops[1:]])
        elif mn.startswith("v_readfirstlane") or mn.startswith("v_readlane"):
            kind = "readlane"; writes = regs_of(ops[0]); reads = set().union(*[regs_of(o) for o in ops[1:]])
        elif mn.startswith("v_permlane"):
            kind = "permlane"; writes = regs_of(ops[0]) | regs_of(ops[1]); reads = set(writes)
        elif mn.startswith("v_"):
            kind = "trans" if mn.replace("_e32", "").replace("_e64", "") in TRANS else "valu"
            writes = regs_of(ops[0]); reads = set().union(*[regs_of(o) for o in ops[1:]]) if len(ops) > 1 else set()
            if mn.startswith("v_fmac") or mn.startswith("v_dot2c") or isdpp: reads |= writes
            if mn.startswith("v_add_co") or mn.startswith("v_addc_co") or mn.startswith("v_sub_co"):
                writes |= regs_of(ops[1])
            if mn.startswith("v_cndmask") and len(ops) == 3: reads.add(("vcc", 0))
            if isdpp: kind = "dpp"
        elif mn.startswith("buffer_load") or mn.startswith("global_load"):
            kind = "vmem"
            if "lds" in mods.split() or "_lds_" in mn:
                reads = set().union(*[regs_of(o) for o in ops]) | {("m0", 0)}; kind = "vmem_lds"
            else:
                writes = regs_of(ops[0]); reads = set().union(*[regs_of(o) for o in ops[1:]])
        elif mn.startswith("buffer_store") or mn.startswith("global_store") or mn.startswith("global_atomic") or mn.startswith("buffer_atomic"):
            kind = "vmem_st"; reads = set().union(*[regs_of(o) for o in ops])
            if "x4" in mn or "x3" in mn:
                data = ops[0] if mn.startswith("buffer") else ops[1]
                srcC = regs_of(data)
                kind = "vmem_stw"
        elif mn.startswith("ds_read") or mn.startswith("ds_bpermute") or mn.startswith("ds_swizzle") or "_rtn" in mn:
            kind = "ds"; writes = regs_of(ops[0]); reads = set().union(*[regs_of(o) for o in ops[1:]])
        elif mn.startswith("ds_"):
            kind = "ds"; reads = set().union(*[regs_of(o) for o in ops])
        elif mn.startswith("s_"):
            kind = "salu"
            if mn.startswith("s_cmp") or mn.startswith("s_cbranch") or mn in ("s_branch", "s_waitcnt", "s_barrier", "s_endpgm", "s_setprio", "s_sleep"):
                reads = set().union(*[regs_of(o) for o in ops]) if ops else set()
            else:
                writes = regs_of(ops[0]); reads = set().union(*[regs_of(o) for o in ops[1:]]) if len(ops) > 1 else set()
                if "saveexec" in mn: writes.add(("exec", 0))
        isvalu = kind in ("valu", "trans", "dpp", "readlane", "permlane")
        need = 0
        d = 0
        for h in reversed(self.hist):
            if d > 24: break
            hk = h["kind"]
            hv = hk in ("valu", "trans", "dpp", "readlane", "permlane")
            req = 0
            vw = {r for r in h["writes"] if r[0] in ("v", "a")}
            sw = {r for r in h["writes"] if r[0] in ("s", "vcc")}
            allreads = reads | srcC if kind == "mfma" else reads
            if hv:
                if kind == "mfma" and vw & allreads: req = max(req, 2)
                if kind == "readlane" and vw & reads: req = max(req, 1)
                if kind in ("dpp", "permlane") and vw & reads: req = max(req, 2)
                if isvalu and sw & reads: req = max(req, 4 if kind == "readlane" else 2)
                if kind.startswith("vmem") and sw & reads: req = max(req, 5)
                if kind == "salu" and sw & reads: req = max(req, 1)
                if hk == "trans" and isvalu and kind != "trans" and vw & reads: req = max(req, 1)
                if hk == "trans" and (kind.startswith("vmem") or kind == "ds") and vw & reads: req = max(req, 1)
            if hk == "mfma":
                D = h["writes"]
                if kind == "mfma":
                    if D & reads: req = max(req, 8)
                    if D & srcC and D != srcC: req = max(req, 6)
                    if D & writes and D != srcC: req = max(req, 8)
                else:
                    if D & (reads | writes): req = max(req, 8)
                if isvalu and h["srcC"] & writes: req = max(req, 3)
            if hk == "salu" and ("m0", 0) in h["writes"] and kind == "vmem_lds": req = max(req, 1)
            if hk == "vmem_stw" and h["srcC"] & writes: req = max(req, 2)
            if req > d: need = max(need, req - d)
            d += h["slots"]
        while need > 0:
            n = min(need, 16)
            self.lines.append(f"    s_nop {n-1}")
            self.hist.append(dict(kind="nop", writes=set(), reads=set(), srcC=set(), slots=n))
            need -= n
        self.lines.append("    " + text)
        self.hist.append(dict(kind=kind, writes=writes, reads=reads, srcC=srcC, slots=slots))
        if len(self.hist) > 200: self.hist = self.hist[-100:]
    def text(self):
        return "\n".join(self.lines) + "\n"
```

```python
import sys
from emit import Emit

KN = "recurrent_scan__sliding_block_cached__mixer_channel_mlp__decode_kernel"

LDS_K = 0
LDS_WQ = 65536
LDS_OP = LDS_WQ
LDS_W1 = 81920
LDS_XN = 114688
LDS_Q = 118784
LDS_Y = 119808
LDS_MX = 121856
LDS_L = 121984
LDS_O = 122112
LDS_H = 122368
LDS_HP = 122624
LDS_G = 122880
LDS_FLG = 122944
LDS_TAG = LDS_FLG + 60
LDS_TOTAL = 123136
F_C1, F_Q, F_MX, F_OP, F_O, F_H, F_G = range(7)

WS_Q = 0x10000
WS_O = 0x100000
WS_OS = 0x200000
WS_F = 0x300000
WS_Z = 0x400000
WS_DBG = 0x800000

LOG2E = 0x3fb8aa3b
SCALE = 0x3db504f3

def gen(stamps=False, rot=True, dump=False):
    e = Emit(); I = e.I
    uid = [0]
    def L(prefix):
        uid[0] += 1
        return f"L_{prefix}_{uid[0]}"
    hdr = open("recurrent_scan__sliding_block_cached__mixer_channel_mlp__decode.s.ref").read().split("; Override launch")[0]
    e.raw(hdr.rstrip())
    e.raw(f"; @launch grid=(256,1,1) block=(768,1,1) lds={LDS_TOTAL}")
    e.raw('.amdgcn_target "amdgcn-amd-amdhsa--gfx950"')
    e.raw(".text"); e.raw(f".globl {KN}"); e.raw(".p2align 8"); e.raw(f".type {KN},@function"); e.raw(f"{KN}:")

    sWAVE, sKVH, sSP, sB, sI = "s3", "s4", "s5", "s6", "s7"
    pX, pK, pV, pWQ, pWO, pBX, pW1, pB1 = [(8 + 2 * j) for j in range(8)]
    pW2, pB2, pOUT, pDBG = 24, 26, 28, 30
    pWS = 32
    sT = "s60"
    STAMP_BASE = 80
    nst = [0]
    def stamp(idx):
        if not stamps: return
        I("s_memrealtime s[96:97]")
        I("s_waitcnt lgkmcnt(0)")
        I(f"s_mov_b32 s{STAMP_BASE+idx}, s96")
    def dump_stamps():
        if not stamps: return
        I("s_mul_i32 s98, s2, 12"); I(f"s_add_u32 s98, s98, {sWAVE}"); I("s_lshl_b32 s98, s98, 6"); I(f"s_add_u32 s98, s98, {WS_DBG}")
        I("s_mov_b64 exec, 1")
        I("v_mov_b32 v4, s98")
        for q in range(4):
            for j in range(4):
                I(f"v_mov_b32 v{8+j}, s{STAMP_BASE+4*q+j}")
            I(f"global_store_dwordx4 v4, v[8:11], s[{pWS}:{pWS+1}] offset:{16*q}")
            I("s_waitcnt vmcnt(0)")
        I("s_mov_b64 exec, -1")

    def srd(dst, ptr, off_sgpr, size):
        if off_sgpr is None:
            I(f"s_mov_b32 s{dst}, s{ptr}"); I(f"s_and_b32 s{dst+1}, s{ptr+1}, 0xffff")
        else:
            I(f"s_add_u32 s{dst}, s{ptr}, {off_sgpr}"); I(f"s_addc_u32 s{dst+1}, s{ptr+1}, 0"); I(f"s_and_b32 s{dst+1}, s{dst+1}, 0xffff")
        I(f"s_mov_b32 s{dst+2}, {size}"); I(f"s_mov_b32 s{dst+3}, 0x20000")

    vFLG, vONE, vTMPF = "v5", "v6", "v7"
    def flag_inc(f):
        I("s_waitcnt lgkmcnt(0)")
        I("s_mov_b64 exec, 1")
        I(f"ds_add_u32 {vFLG}, {vONE} offset:{4*f}")
        I("s_mov_b64 exec, -1")
    def flag_wait(f, n):
        lp = L("fw")
        e.label(lp)
        I(f"ds_read_b32 {vTMPF}, {vFLG} offset:{4*f}")
        I("s_waitcnt lgkmcnt(0)")
        I(f"v_readfirstlane_b32 s61, {vTMPF}")
        I(f"s_cmp_lt_u32 s61, {n}")
        I(f"s_cbranch_scc1 {lp}")

    def allreduce_rows(v, t, op):
        I(f"v_mov_b32 {t}, {v}")
        I(f"v_permlane16_swap_b32 {v}, {t}")
        I(f"{op} {v}, {v}, {t}")
        I(f"v_mov_b32 {t}, {v}")
        I(f"v_permlane32_swap_b32 {v}, {t}")
        I(f"{op} {v}, {v}, {t}")
    def allreduce_wave_add(v, t):
        I(f"v_add_f32_dpp {v}, {v}, {v} quad_perm:[1,0,3,2] row_mask:0xf bank_mask:0xf")
        I(f"v_add_f32_dpp {v}, {v}, {v} quad_perm:[2,3,0,1] row_mask:0xf bank_mask:0xf")
        I(f"v_add_f32_dpp {v}, {v}, {v} row_half_mirror row_mask:0xf bank_mask:0xf")
        I(f"v_add_f32_dpp {v}, {v}, {v} row_mirror row_mask:0xf bank_mask:0xf")
        allreduce_rows(v, t, "v_add_f32")
    def bf16r(dst, src):
        I(f"v_cvt_pk_bf16_f32 {dst}, {src}, {src}")
        I(f"v_and_b32 {dst}, 0xffff0000, {dst}")

    def layernorm(src, f, t):
        for j in range(4):
            I(f"v_lshlrev_b32 v{f+2*j}, 16, v{src+j}")
            I(f"v_and_b32 v{f+2*j+1}, 0xffff0000, v{src+j}")
        s, u, m, w = f"v{t}", f"v{t+1}", f"v{t+2}", f"v{t+3}"
        I(f"v_add_f32 {s}, v{f}, v{f+1}"); I(f"v_add_f32 {u}, v{f+2}, v{f+3}")
        I(f"v_add_f32 {m}, v{f+4}, v{f+5}"); I(f"v_add_f32 {w}, v{f+6}, v{f+7}")
        I(f"v_add_f32 {s}, {s}, {u}"); I(f"v_add_f32 {m}, {m}, {w}"); I(f"v_add_f32 {s}, {s}, {m}")
        allreduce_wave_add(s, u)
        I(f"v_mul_f32 {m}, 0x3b000000, {s}")
        I(f"v_sub_f32 {u}, v{f}, {m}"); I(f"v_mul_f32 {s}, {u}, {u}")
        for j in range(1, 8):
            I(f"v_sub_f32 {u}, v{f+j}, {m}"); I(f"v_fmac_f32 {s}, {u}, {u}")
        allreduce_wave_add(s, u)
        I(f"v_mul_f32 {s}, 0x3b000000, {s}")
        bf16r(m, m)
        bf16r(s, s)
        I(f"v_add_f32 {s}, 0x3727c5ac, {s}")
        bf16r(s, s)
        I(f"v_sqrt_f32 {s}, {s}")
        bf16r(s, s)
        I(f"v_rcp_f32 {s}, {s}")
        for j in range(4):
            I(f"v_sub_f32 v{f+2*j}, v{f+2*j}, {m}"); I(f"v_sub_f32 v{f+2*j+1}, v{f+2*j+1}, {m}")
            I(f"v_cvt_pk_bf16_f32 {u}, v{f+2*j}, v{f+2*j+1}")
            I(f"v_lshlrev_b32 v{f+2*j}, 16, {u}"); I(f"v_and_b32 v{f+2*j+1}, 0xffff0000, {u}")
            I(f"v_mul_f32 v{f+2*j}, v{f+2*j}, {s}"); I(f"v_mul_f32 v{f+2*j+1}, v{f+2*j+1}, {s}")
            I(f"v_cvt_pk_bf16_f32 v{src+j}, v{f+2*j}, v{f+2*j+1}")

    def gather(loads, base, mbase=62):
        for j, (d, vo, imm, im) in enumerate(loads):
            I(f"s_mov_b64 s[{mbase+2*j}:{mbase+2*j+1}], {im if im is not None else -1}")
        I("s_mov_b32 s59, 0")
        lp = L("g"); done = L("gd")
        e.label(lp)
        for j, (d, vo, imm, im) in enumerate(loads):
            sk = L("gs")
            I(f"s_mov_b64 exec, s[{mbase+2*j}:{mbase+2*j+1}]")
            I(f"s_cbranch_execz {sk}")
            I(f"global_load_dwordx4 v[{d}:{d+3}], {vo}, s[{base}:{base+1}] offset:{imm} sc1")
            e.label(sk)
        I("s_mov_b64 exec, -1")
        I("s_waitcnt vmcnt(0)")
        I("s_mov_b64 s[56:57], 0")
        for j, (d, vo, imm, im) in enumerate(loads):
            I(f"v_cmp_ne_u32 vcc, {sT}, v{d+1}")
            I(f"v_cmp_ne_u32 s[54:55], {sT}, v{d+3}")
            I("s_or_b64 s[54:55], s[54:55], vcc")
            I(f"s_and_b64 s[{mbase+2*j}:{mbase+2*j+1}], s[{mbase+2*j}:{mbase+2*j+1}], s[54:55]")
            I(f"s_or_b64 s[56:57], s[56:57], s[{mbase+2*j}:{mbase+2*j+1}]")
        I("s_add_u32 s59, s59, 1")
        I("s_cmp_ge_u32 s59, 0x40000")
        I(f"s_cbranch_scc1 {done}")
        I("s_cmp_lg_u64 s[56:57], 0")
        I(f"s_cbranch_scc1 {lp}")
        e.label(done)

    def make_masks(mb, vn, t):
        I(f"v_and_b32 {t}, 1, {vn}")
        I(f"v_cmp_eq_u32 vcc, 1, {t}")
        I(f"v_mov_b32 v{mb}, 0xffff")
        I(f"v_mov_b32 v{mb+1}, 0xffff0000")
        I(f"v_cndmask_b32 v{mb+3}, v{mb}, v{mb+1}, vcc")
        I(f"v_bfe_u32 {t}, {vn}, 1, 2")
        for i in range(4):
            I(f"v_cmp_eq_u32 vcc, {i}, {t}")
            I(f"v_cndmask_b32 v{mb+i}, 0, v{mb+3}, vcc")

    def eta_combine_publish(acc, t, vaddr, base, imm):
        for r in range(4):
            I(f"v_mov_b32 v{t+r}, v{acc+r}")
        for r in range(4):
            I(f"v_permlane32_swap_b32 v{acc+r}, v{t+r}")
        for r in range(4):
            I(f"v_add_f32_dpp v{acc+r}, v{t+r}, v{acc+r} row_ror:8 row_mask:0xf bank_mask:0xf")
        I(f"v_cndmask_b32 v{t+4}, v{acc}, v{acc+2}, s[52:53]")
        I(f"v_mov_b32 v{t+5}, {sT}")
        I(f"v_cndmask_b32 v{t+6}, v{acc+1}, v{acc+3}, s[52:53]")
        I(f"v_mov_b32 v{t+7}, {sT}")
        I("s_mov_b64 exec, s[50:51]")
        I(f"global_store_dwordx4 {vaddr}, v[{t+4}:{t+7}], s[{base}:{base+1}] offset:{imm} sc1")
        I("s_mov_b64 exec, -1")
    def eta_setup(vaddr, vn, vg, t, sbase_off):
        I(f"v_lshlrev_b32 {vaddr}, 12, {vn}")
        I(f"v_and_b32 {t}, 1, {vg}")
        I(f"v_lshl_add_u32 {vaddr}, {t}, 5, {vaddr}")
        I(f"v_lshrrev_b32 {t}, 1, {vg}")
        I(f"v_lshl_add_u32 {vaddr}, {t}, 4, {vaddr}")
        I(f"v_add_u32 {vaddr}, {sbase_off}, {vaddr}")
        I("s_mov_b32 s50, 0x00ff00ff"); I("s_mov_b32 s51, 0x00ff00ff")
        I("s_mov_b32 s52, 0"); I("s_mov_b32 s53, -1")

    def reduce_cols(a0, a1, t):
        for a in (a0, a1):
            I(f"v_add_f32_dpp {a}, {a}, {a} row_ror:4 row_mask:0xf bank_mask:0xf")
        for a in (a0, a1):
            I(f"v_add_f32_dpp {a}, {a}, {a} row_ror:8 row_mask:0xf bank_mask:0xf")
        for a in (a0, a1):
            allreduce_rows(a, t, "v_add_f32")

    I("s_cmp_ge_u32 s2, 256")
    I("s_cbranch_scc1 L_end")
    if stamps:
        for j in range(16): I(f"s_mov_b32 s{STAMP_BASE+j}, 0")
    stamp(0)
    I("s_load_dwordx16 s[8:23], s[0:1], 0")
    I("s_load_dwordx8 s[24:31], s[0:1], 64")
    I("s_load_dwordx2 s[32:33], s[0:1], 96")
    I("v_lshrrev_b32 v1, 6, v0")
    I("v_and_b32 v0, 63, v0")
    I(f"v_readfirstlane_b32 {sWAVE}, v1")
    I("v_and_b32 v1, 15, v0")
    I("v_lshrrev_b32 v2, 4, v0")
    I(f"s_and_b32 {sKVH}, s2, 7")
    I(f"s_bfe_u32 {sSP}, s2, 0x30003")
    I(f"s_lshr_b32 {sB}, s2, 6")
    I(f"s_and_b32 {sI}, s2, 63")
    I(f"v_mov_b32 {vFLG}, {LDS_FLG}")
    I(f"v_mov_b32 {vONE}, 1")
    I(f"s_cmp_lg_u32 {sWAVE}, 0")
    I("s_cbranch_scc1 L_noinit")
    I("v_lshlrev_b32 v7, 2, v1")
    I(f"v_add_u32 v7, {LDS_FLG}, v7")
    I("v_mov_b32 v8, 0")
    I("ds_write_b32 v7, v8")
    e.label("L_noinit")
    I("s_waitcnt lgkmcnt(0)")
    I("s_barrier")
    I(f"s_cmp_ge_u32 {sWAVE}, 4")
    I("s_cbranch_scc1 L_worker")

    I("s_setprio 3")
    I(f"s_load_dword {sT}, s[{pWS}:{pWS+1}], 0 glc")
    I(f"s_lshl_b32 s34, {sWAVE}, 10")
    I("v_lshl_add_u32 v3, v0, 4, s34")
    I(f"global_load_dwordx4 v[12:15], v3, s[{pX}:{pX+1}]")
    I(f"s_lshl_b32 s34, {sB}, 7"); I(f"s_lshl_b32 s35, {sWAVE}, 5"); I("s_add_u32 s34, s34, s35"); I("s_lshl_b32 s34, s34, 13")
    I(f"s_lshl_b32 s35, {sKVH}, 10"); I("s_add_u32 s34, s34, s35")
    I(f"s_lshl_b32 s35, {sSP}, 7"); I("s_add_u32 s34, s34, s35")
    I("s_sub_u32 s35, 0x400000, s34")
    srd(36, pWQ, "s34", "s35")
    I("v_lshrrev_b32 v8, 3, v0"); I("v_and_b32 v9, 7, v0")
    I("v_lshlrev_b32 v8, 13, v8"); I("v_lshl_add_u32 v8, v9, 4, v8")
    I(f"s_lshl_b32 s34, {sWAVE}, 12"); I(f"s_add_u32 s34, s34, {LDS_WQ}")
    for t in range(4):
        I(f"s_add_u32 m0, s34, {1024*t}")
        I(f"s_mov_b32 s35, {65536*t}")
        I("buffer_load_dwordx4 v8, s[36:39], s35 offen nt lds")
    I("v_lshrrev_b32 v8, 2, v1"); I("v_lshl_add_u32 v8, v2, 3, v8"); I("v_lshlrev_b32 v8, 7, v8")
    I("v_and_b32 v9, 3, v1"); I("v_lshl_add_u32 v8, v9, 3, v8")
    I(f"s_lshl_b32 s34, {sWAVE}, 5"); I(f"s_add_u32 s34, s34, {LDS_WQ}")
    I("v_add_u32 v8, s34, v8")
    I("v_lshlrev_b32 v9, 10, v9"); I("v_lshl_add_u32 v9, v2, 4, v9")
    I(f"s_lshl_b32 s34, {sB}, 8"); I(f"s_add_u32 s34, s34, {LDS_XN}")
    I("v_add_u32 v9, s34, v9")
    I(f"v_add_u32 v3, {LDS_XN}, v3")
    I(f"s_lshl_b32 s34, {sKVH}, 16"); I(f"s_lshl_b32 s35, {sB}, 12"); I("s_add_u32 s34, s34, s35")
    I(f"s_lshl_b32 s35, {sSP}, 9"); I("s_add_u32 s34, s34, s35")
    I(f"s_lshl_b32 s35, {sWAVE}, 7"); I("s_add_u32 s34, s34, s35"); I(f"s_add_u32 s34, s34, {WS_Q}")
    I("v_lshlrev_b32 v10, 14, v1"); I("v_lshl_add_u32 v10, v2, 5, v10"); I("v_add_u32 v10, s34, v10")
    I("s_waitcnt vmcnt(4)")
    stamp(1)
    layernorm(12, 16, 24)
    I("ds_write_b128 v3, v[12:15]")
    I("s_waitcnt vmcnt(0)")
    stamp(2)
    flag_inc(F_C1)
    I(f"s_add_u32 {sT}, {sT}, 1")
    flag_wait(F_C1, 4)
    stamp(3)
    for ks in range(4):
        I(f"ds_read_b64_tr_b16 v[{32+4*ks}:{33+4*ks}], v8 offset:{4096*ks}")
        I(f"ds_read_b64_tr_b16 v[{34+4*ks}:{35+4*ks}], v8 offset:{4096*ks+512}")
        I(f"ds_read_b128 v[{48+4*ks}:{51+4*ks}], v9 offset:{64*ks}")
    for ks in range(4):
        I(f"s_waitcnt lgkmcnt({3*(3-ks)})")
        I(f"v_mfma_f32_16x16x32_bf16 v[16:19], v[{32+4*ks}:{35+4*ks}], v[{48+4*ks}:{51+4*ks}], {'0' if ks == 0 else 'v[16:19]'}")
    I(f"v_mov_b32 v21, {sT}"); I(f"v_mov_b32 v23, {sT}"); I(f"v_mov_b32 v25, {sT}"); I(f"v_mov_b32 v27, {sT}")
    I("v_mov_b32 v20, v16"); I("v_mov_b32 v22, v17"); I("v_mov_b32 v24, v18"); I("v_mov_b32 v26, v19")
    I("s_mov_b32 s34, 0x000f000f"); I("s_mov_b32 s35, 0x000f000f")
    I("s_mov_b64 exec, s[34:35]")
    I(f"global_store_dwordx4 v10, v[20:23], s[{pWS}:{pWS+1}] sc1")
    I(f"global_store_dwordx4 v10, v[24:27], s[{pWS}:{pWS+1}] offset:16 sc1")
    I("s_mov_b64 exec, -1")
    stamp(4)
    I(f"s_cmp_ge_u32 {sWAVE}, 2")
    I("s_cbranch_scc1 L_mlp")

    I(f"s_lshl_b32 s34, {sKVH}, 16"); I(f"s_lshl_b32 s35, {sB}, 14"); I("s_add_u32 s34, s34, s35")
    I(f"s_lshl_b32 s35, {sWAVE}, 11"); I("s_add_u32 s34, s34, s35"); I(f"s_add_u32 s34, s34, {WS_Q}")
    I("v_lshl_add_u32 v8, v0, 4, s34")
    I("v_add_u32 v9, 0x1000, v8"); I("v_add_u32 v10, 0x2000, v8"); I("v_add_u32 v11, 0x3000, v8")
    loads = []
    for hh in range(2):
        for ks in range(4):
            loads.append((32 + 16 * hh + 4 * ks, f"v{8+ks}", 1024 * hh, None))
    gather(loads, pWS)
    stamp(5)
    I(f"s_lshl_b32 s34, {sWAVE}, 9"); I(f"s_add_u32 s34, s34, {LDS_Q}")
    I("v_lshl_add_u32 v8, v0, 2, s34")
    for hh in range(2):
        b0 = 32 + 16 * hh
        I(f"v_add_f32 v{b0}, v{b0}, v{b0+4}"); I(f"v_add_f32 v{b0+2}, v{b0+2}, v{b0+6}")
        I(f"v_add_f32 v{b0+8}, v{b0+8}, v{b0+12}"); I(f"v_add_f32 v{b0+10}, v{b0+10}, v{b0+14}")
        I(f"v_add_f32 v{b0}, v{b0}, v{b0+8}"); I(f"v_add_f32 v{b0+2}, v{b0+2}, v{b0+10}")
        I(f"v_cvt_pk_bf16_f32 v{b0}, v{b0}, v{b0+2}")
        I(f"ds_write_b32 v8, v{b0} offset:{256*hh}")
    I(f"v_mov_b32 v9, {sT}")
    I(f"ds_write_b32 {vFLG}, v9 offset:60")
    flag_inc(F_Q)
    stamp(6)
    I(f"s_cmp_eq_u32 {sWAVE}, 1")
    I("s_cbranch_scc1 L_h1")

    I("v_and_b32 v3, 3, v0")
    I(f"s_lshl_b32 s34, {sB}, 10"); I(f"s_lshl_b32 s35, {sI}, 4"); I("s_add_u32 s34, s34, s35")
    I("v_lshl_add_u32 v28, v3, 2, s34")
    I(f"global_load_dword v29, v28, s[{pX}:{pX+1}]")
    I(f"s_lshl_b32 s34, {sB}, 3"); I(f"s_add_u32 s34, s34, {sKVH}"); I("s_lshl_b32 s34, s34, 3"); I(f"s_add_u32 s34, s34, {sSP}")
    I("s_lshl_b32 s35, s34, 12"); I(f"s_add_u32 s35, s35, {WS_O}")
    I("v_lshrrev_b32 v8, 5, v0"); I("v_and_b32 v9, 31, v0")
    I("v_lshlrev_b32 v10, 11, v8"); I("v_lshl_add_u32 v10, v9, 4, v10"); I("v_add_u32 v10, s35, v10")
    I("s_lshl_b32 s35, s34, 7"); I(f"s_add_u32 s35, s35, {WS_OS}")
    I("v_lshlrev_b32 v11, 6, v8"); I("v_add_u32 v11, s35, v11")
    I("v_lshlrev_b32 v12, 1, v9")
    if rot:
        I(f"s_lshl_b32 s34, {sB}, 1")
        I("v_subrev_u32 v13, s34, v12"); I("v_and_b32 v13, 7, v13"); I("v_and_b32 v12, 0x38, v12"); I("v_or_b32 v12, v12, v13")
    I("v_lshlrev_b32 v12, 2, v12"); I(f"v_add_u32 v12, {LDS_O}, v12")
    I(f"s_lshl_b32 s34, s2, 12"); I(f"s_add_u32 s34, s34, {WS_F}")
    I("v_lshl_add_u32 v14, v0, 4, s34")
    loads = [(32 + 4 * t, "v10", 512 * t, None) for t in range(4)] + [(48 + 4 * t, "v11", 16 * t, None) for t in range(4)]
    gather(loads, pWS)
    stamp(7)
    I("v_max_f32 v16, v48, v52"); I("v_max3_f32 v16, v16, v56, v60")
    I("v_mov_b32 v17, v16"); I("v_permlane32_swap_b32 v16, v17"); I("v_max_f32 v16, v16, v17")
    for t in range(4):
        I(f"v_sub_f32 v{48+4*t}, v{48+4*t}, v16"); I(f"v_mul_f32 v{48+4*t}, {LOG2E}, v{48+4*t}")
    for t in range(4):
        I(f"v_exp_f32 v{48+4*t}, v{48+4*t}")
    I("v_mul_f32 v18, v48, v50"); I("v_mul_f32 v19, v48, v32"); I("v_mul_f32 v20, v48, v34")
    for t in range(1, 4):
        I(f"v_fmac_f32 v18, v{48+4*t}, v{50+4*t}"); I(f"v_fmac_f32 v19, v{48+4*t}, v{32+4*t}"); I(f"v_fmac_f32 v20, v{48+4*t}, v{34+4*t}")
    for r in (18, 19, 20):
        I(f"v_mov_b32 v{r+4}, v{r}")
    for r in (18, 19, 20):
        I(f"v_permlane32_swap_b32 v{r}, v{r+4}")
    for r in (18, 19, 20):
        I(f"v_add_f32 v{r}, v{r}, v{r+4}")
    I("v_rcp_f32 v18, v18")
    I("v_mul_f32 v19, v19, v18"); I("v_mul_f32 v20, v20, v18")
    I("v_cvt_pk_bf16_f32 v22, v19, v19"); I("v_cvt_pk_bf16_f32 v23, v20, v20")
    I("ds_write_b64 v12, v[22:23]")
    flag_inc(F_O)
    stamp(8)
    loads = [(32 + 4 * t, "v14", 1024 * t, None) for t in range(4)]
    gather(loads, pWS)
    stamp(9)
    I("v_add_f32 v32, v32, v36"); I("v_add_f32 v34, v34, v38"); I("v_add_f32 v40, v40, v44"); I("v_add_f32 v42, v42, v46")
    I("v_add_f32 v32, v32, v40"); I("v_add_f32 v34, v34, v42")
    reduce_cols("v32", "v34", "v36")
    flag_wait(F_G, 1)
    I("v_lshlrev_b32 v8, 3, v3"); I(f"v_add_u32 v8, {LDS_G}, v8")
    I("ds_read_b64 v[36:37], v8")
    I("v_cvt_pk_bf16_f32 v32, v32, v34")
    I("v_lshlrev_b32 v33, 16, v32"); I("v_and_b32 v34, 0xffff0000, v32")
    I("s_waitcnt lgkmcnt(0)")
    I("v_mul_f32 v33, v33, v36"); I("v_mul_f32 v34, v34, v37")
    I("v_cvt_pk_bf16_f32 v32, v33, v34")
    I("v_lshlrev_b32 v33, 16, v32"); I("v_and_b32 v34, 0xffff0000, v32")
    I("v_lshlrev_b32 v36, 16, v29"); I("v_and_b32 v37, 0xffff0000, v29")
    I("v_add_f32 v33, v36, v33"); I("v_add_f32 v34, v37, v34")
    I("v_cvt_pk_bf16_f32 v32, v33, v34")
    I("s_mov_b64 exec, 15")
    I(f"global_store_dword v28, v32, s[{pOUT}:{pOUT+1}]")
    I("s_mov_b64 exec, -1")
    I("s_cmp_lg_u32 s2, 0")
    I("s_cbranch_scc1 L_h0_end")
    I("v_mov_b32 v8, 0"); I(f"v_mov_b32 v9, {sT}")
    I("s_mov_b64 exec, 1")
    I(f"global_store_dword v8, v9, s[{pWS}:{pWS+1}]")
    I("s_mov_b64 exec, -1")
    e.label("L_h0_end")
    stamp(10)
    dump_stamps()
    I("s_endpgm")

    e.label("L_h1")
    I("v_and_b32 v3, 3, v0")
    I(f"s_lshl_b32 s35, {sI}, 4")
    I("v_lshl_add_u32 v28, v3, 2, s35")
    I(f"global_load_dword v29, v28, s[{pB2}:{pB2+1}]")
    I(f"s_lshl_b32 s34, s2, 12"); I(f"s_add_u32 s34, s34, {WS_Z}")
    I("v_lshl_add_u32 v14, v0, 4, s34")
    for r in range(44, 48): I(f"v_mov_b32 v{r}, 0")
    I("s_mov_b32 s34, -1"); I("s_mov_b32 s35, 0")
    loads = [(32 + 4 * t, "v14", 1024 * t, None if t < 3 else "s[34:35]") for t in range(4)]
    gather(loads, pWS)
    stamp(7)
    I("v_add_f32 v32, v32, v36"); I("v_add_f32 v34, v34, v38"); I("v_add_f32 v40, v40, v44"); I("v_add_f32 v42, v42, v46")
    I("v_add_f32 v32, v32, v40"); I("v_add_f32 v34, v34, v42")
    reduce_cols("v32", "v34", "v36")
    I("v_cvt_pk_bf16_f32 v32, v32, v34")
    I("v_lshlrev_b32 v33, 16, v32"); I("v_and_b32 v34, 0xffff0000, v32")
    I("v_lshlrev_b32 v36, 16, v29"); I("v_and_b32 v37, 0xffff0000, v29")
    I("v_add_f32 v33, v33, v36"); I("v_add_f32 v34, v34, v37")
    I("v_cvt_pk_bf16_f32 v32, v33, v34")
    I("v_lshlrev_b32 v33, 16, v32"); I("v_and_b32 v34, 0xffff0000, v32")
    I(f"v_mul_f32 v36, 0xbfb8aa3b, v33"); I(f"v_mul_f32 v37, 0xbfb8aa3b, v34")
    I("v_exp_f32 v36, v36"); I("v_exp_f32 v37, v37")
    I("v_add_f32 v36, 1.0, v36"); I("v_add_f32 v37, 1.0, v37")
    I("v_rcp_f32 v36, v36"); I("v_rcp_f32 v37, v37")
    I("v_mul_f32 v33, v33, v36"); I("v_mul_f32 v34, v34, v37")
    I("v_cvt_pk_bf16_f32 v32, v33, v34")
    I("v_lshlrev_b32 v36, 16, v32"); I("v_and_b32 v37, 0xffff0000, v32")
    I("v_lshlrev_b32 v8, 3, v3"); I(f"v_add_u32 v8, {LDS_G}, v8")
    I("ds_write_b64 v8, v[36:37]")
    flag_inc(F_G)
    stamp(8)
    dump_stamps()
    I("s_endpgm")

    e.label("L_mlp")
    I("s_setprio 0")
    I(f"s_cmp_ge_u32 {sI}, 56")
    I("s_cbranch_scc1 L_mlp_end")
    sU = "s40"
    I(f"s_sub_u32 {sU}, {sWAVE}, 2")
    I(f"s_lshl_b32 s34, {sI}, 6")
    I("v_lshl_add_u32 v8, v1, 1, s34")
    I(f"global_load_ushort v28, v8, s[{pB1}:{pB1+1}]")
    I(f"global_load_ushort v29, v8, s[{pB1}:{pB1+1}] offset:32")
    I(f"s_mul_i32 s34, {sU}, {256*3584}"); I(f"s_lshl_b32 s35, {sI}, 6"); I("s_add_u32 s34, s34, s35")
    I(f"s_sub_u32 s35, {512*3584}, s34")
    srd(36, pW1, "s34", "s35")
    I("v_lshrrev_b32 v8, 2, v0"); I("v_and_b32 v9, 3, v0")
    I("v_mul_u32_u24 v8, 3584, v8"); I("v_lshl_add_u32 v8, v9, 4, v8")
    I(f"s_lshl_b32 s41, {sU}, 14"); I(f"s_add_u32 s41, s41, {LDS_W1}")
    if rot: I(f"s_lshl_b32 s42, {sB}, 2")
    else: I("s_mov_b32 s42, 0")
    I("s_mov_b32 s43, 0")
    e.label("L_w1loop")
    I("s_lshl_b32 s34, s42, 10"); I("s_add_u32 m0, s41, s34")
    I("s_mul_i32 s35, s42, 57344")
    I("buffer_load_dwordx4 v8, s[36:39], s35 offen nt lds")
    I("s_add_u32 s42, s42, 1"); I("s_and_b32 s42, s42, 15")
    I("s_add_u32 s43, s43, 1"); I("s_cmp_lt_u32 s43, 16")
    I("s_cbranch_scc1 L_w1loop")
    I(f"s_lshl_b32 s34, {sI}, 15"); I(f"s_lshl_b32 s35, {sU}, 9"); I("s_add_u32 s34, s34, s35")
    I(f"s_sub_u32 s35, {1792*1024}, s34")
    srd(44, pW2, "s34", "s35")
    I("v_lshrrev_b32 v9, 3, v0"); I("v_and_b32 v10, 7, v0")
    I("v_lshlrev_b32 v9, 12, v9"); I("v_lshl_add_u32 v9, v10, 4, v9")
    for cb in range(4):
        for t in range(4):
            r = 64 + 16 * cb + 4 * t
            I(f"buffer_load_dwordx4 v[{r}:{r+3}], v9, s[44:47], 0 offen offset:{1024*t+128*cb} nt")
    stamp(5)
    I(f"s_lshl_b32 s34, {sB}, 10"); I(f"s_add_u32 s34, s34, {LDS_XN}")
    I("v_lshl_add_u32 v3, v0, 4, s34")
    I("ds_read_b128 v[12:15], v3")
    I("s_waitcnt lgkmcnt(0)")
    layernorm(12, 16, 24)
    I(f"s_lshl_b32 s34, {sU}, 10"); I(f"s_add_u32 s34, s34, {LDS_Y}")
    I("v_lshl_add_u32 v3, v0, 4, s34")
    I("ds_write_b128 v3, v[12:15]")
    I(f"s_mul_i32 s34, {sU}, 1536"); I(f"s_add_u32 s34, s34, {LDS_Y}")
    I("v_lshl_add_u32 v3, v2, 4, s34")
    I("s_waitcnt lgkmcnt(0)")
    for ks in range(8):
        I(f"ds_read_b128 v[{128+4*ks}:{131+4*ks}], v3 offset:{64*ks}")
    I("v_lshrrev_b32 v8, 2, v1"); I("v_lshl_add_u32 v8, v2, 3, v8"); I("v_lshlrev_b32 v8, 6, v8")
    I("v_and_b32 v9, 3, v1"); I("v_lshl_add_u32 v8, v9, 3, v8"); I("v_add_u32 v8, s41, v8")
    make_masks(12, "v1", "v9")
    I(f"s_lshl_b32 s34, {sB}, 18"); I(f"s_lshl_b32 s35, {sU}, 17"); I("s_add_u32 s34, s34, s35")
    I(f"s_lshl_b32 s35, {sI}, 6"); I("s_add_u32 s34, s34, s35"); I(f"s_add_u32 s34, s34, {WS_Z}")
    I("v_and_b32 v10, 7, v1")
    eta_setup("v30", "v10", "v2", "v9", "s34")
    I("s_waitcnt vmcnt(16)")
    stamp(6)
    for half in range(2):
        for k4 in range(4):
            ks = 4 * half + k4
            for nt in range(2):
                r = 32 + 8 * k4 + 4 * nt
                I(f"ds_read_b64_tr_b16 v[{r}:{r+1}], v8 offset:{2048*ks+32*nt}")
                I(f"ds_read_b64_tr_b16 v[{r+2}:{r+3}], v8 offset:{2048*ks+32*nt+256}")
        I("s_waitcnt lgkmcnt(0)")
        for k4 in range(4):
            ks = 4 * half + k4
            for nt in range(2):
                r = 32 + 8 * k4 + 4 * nt
                acc = 16 + 4 * nt
                I(f"v_mfma_f32_16x16x32_bf16 v[{acc}:{acc+3}], v[{128+4*ks}:{131+4*ks}], v[{r}:{r+3}], {'0' if ks == 0 else f'v[{acc}:{acc+3}]'}")
        if half == 0: I("s_nop 7")
    I(f"s_lshl_b32 s34, {sU}, 7"); I(f"s_add_u32 s34, s34, {LDS_H}")
    I("v_lshl_add_u32 v9, v1, 2, s34")
    I("ds_write_b32 v9, v16"); I("ds_write_b32 v9, v20 offset:64")
    flag_inc(F_H)
    flag_wait(F_H, 2)
    I("v_lshlrev_b32 v9, 2, v1"); I(f"v_add_u32 v9, {LDS_H}, v9")
    I("ds_read2_b32 v[16:17], v9 offset0:0 offset1:32")
    I("ds_read2_b32 v[18:19], v9 offset0:16 offset1:48")
    I("s_waitcnt lgkmcnt(0)")
    I("v_add_f32 v16, v16, v17"); I("v_add_f32 v18, v18, v19")
    I("v_cvt_pk_bf16_f32 v16, v16, v18")
    I("v_lshlrev_b32 v17, 16, v16"); I("v_and_b32 v18, 0xffff0000, v16")
    I("v_lshlrev_b32 v28, 16, v28"); I("v_lshlrev_b32 v29, 16, v29")
    I("v_add_f32 v17, v17, v28"); I("v_add_f32 v18, v18, v29")
    I("v_cvt_pk_bf16_f32 v16, v17, v18")
    I("v_lshlrev_b32 v17, 16, v16"); I("v_and_b32 v18, 0xffff0000, v16")
    import struct, math
    f2u = lambda x: struct.unpack("<I", struct.pack("<f", x))[0]
    c0 = -2.0 * math.sqrt(2.0 / math.pi) * math.log2(math.e)
    c1 = c0 * 0.044715
    I(f"s_mov_b32 s34, {f2u(c1):#x}"); I(f"v_mov_b32 v22, {f2u(c0):#x}")
    for x, t in (("v17", "v20"), ("v18", "v21")):
        I(f"v_mul_f32 {t}, {x}, {x}")
        I(f"v_fma_f32 {t}, {t}, s34, v22")
        I(f"v_mul_f32 {t}, {t}, {x}")
        I(f"v_exp_f32 {t}, {t}")
        I(f"v_add_f32 {t}, 1.0, {t}")
        I(f"v_rcp_f32 {t}, {t}")
        I(f"v_mul_f32 {x}, {x}, {t}")
        I(f"v_cvt_pk_bf16_f32 {x}, {x}, {x}")
    I(f"s_lshl_b32 s34, {sU}, 7"); I(f"s_add_u32 s34, s34, {LDS_HP}")
    I("v_lshl_add_u32 v9, v1, 2, s34")
    I("ds_write_b32 v9, v17"); I("ds_write_b32 v9, v18 offset:64")
    I("v_lshrrev_b32 v9, 3, v0"); I("v_lshl_add_u32 v9, v9, 4, s34")
    I("s_waitcnt lgkmcnt(0)")
    I("ds_read_b128 v[16:19], v9")
    I("s_waitcnt lgkmcnt(0)")
    for t in range(4):
        for i in range(4):
            I(f"v_and_b32 v{32+4*t+i}, v{16+t}, v{12+i}")
    I("s_waitcnt vmcnt(0)")
    stamp(7)
    for cb in range(4):
        for t in range(4):
            r = 64 + 16 * cb + 4 * t
            acc = 48 + 4 * cb
            I(f"v_mfma_f32_16x16x32_bf16 v[{acc}:{acc+3}], v[{32+4*t}:{35+4*t}], v[{r}:{r+3}], {'0' if t == 0 else f'v[{acc}:{acc+3}]'}")
    for cb in range(4):
        if cb: I("v_add_u32 v30, 0x8000, v30")
        eta_combine_publish(48 + 4 * cb, 128 + 8 * cb, "v30", pWS, 0)
    stamp(8)
    e.label("L_mlp_end")
    dump_stamps()
    I("s_endpgm")

    e.label("L_worker")
    sW = "s40"
    I(f"s_sub_u32 {sW}, {sWAVE}, 4")
    I(f"s_lshl_b32 s34, {sB}, 24"); I(f"s_lshl_b32 s35, {sKVH}, 21"); I("s_add_u32 s34, s34, s35")
    I(f"s_lshl_b32 s35, {sSP}, 16"); I("s_add_u32 s34, s34, s35")
    I(f"s_lshl_b32 s35, {sW}, 13"); I("s_add_u32 s34, s34, s35"); I(f"s_add_u32 s34, s34, {6144*256}")
    srd(36, pK, "s34", 8192)
    srd(44, pV, "s34", 8192)
    I("v_xor_b32 v3, v1, v2")
    I("v_lshlrev_b32 v8, 8, v2"); I("v_lshl_add_u32 v8, v3, 4, v8")
    I("v_xor_b32 v9, 64, v8"); I("v_xor_b32 v10, 0x80, v8"); I("v_xor_b32 v11, 0xc0, v8")
    I(f"s_lshl_b32 s41, {sW}, 13")
    I("s_movk_i32 s42, 0x1000")
    for t in range(8):
        if t % 4 == 0: I(f"s_add_u32 m0, s41, {4096*(t//4)}")
        I(f"buffer_load_dwordx4 v{8+(t&3)}, s[36:39], {'0' if t < 4 else 's42'} offen offset:{1024*(t&3)} nt lds")
    I("v_lshlrev_b32 v4, 10, v2"); I("v_lshl_add_u32 v4, v1, 4, v4")
    VV, VWO, VKF, VQF = 32, 64, 96, 128
    for j in range(8):
        T, r = j // 4, j % 4
        I(f"buffer_load_dwordx4 v[{VV+4*j}:{VV+4*j+3}], v4, s[44:47], {'0' if T == 0 else 's42'} offen offset:{256*r} nt")
    stamp(1)
    I(f"s_lshl_b32 s34, {sKVH}, 19"); I(f"s_lshl_b32 s35, {sSP}, 16"); I("s_add_u32 s34, s34, s35")
    I(f"s_lshl_b32 s35, {sW}, 7"); I("s_add_u32 s34, s34, s35")
    I("s_sub_u32 s35, 0x400000, s34")
    srd(36, pWO, "s34", "s35")
    I("v_lshrrev_b32 v12, 3, v0"); I("v_and_b32 v13, 7, v0")
    I("v_lshlrev_b32 v4, 13, v12"); I("v_lshl_add_u32 v4, v13, 4, v4")
    I("v_lshlrev_b32 v15, 5, v12"); I(f"v_add_u32 v15, {LDS_O}, v15")
    I("v_lshlrev_b32 v8, 8, v1"); I("v_lshl_add_u32 v8, v3, 4, v8"); I("v_add_u32 v8, s41, v8")
    I("v_xor_b32 v9, 64, v8"); I("v_xor_b32 v10, 0x80, v8"); I("v_xor_b32 v11, 0xc0, v8")
    I("v_lshrrev_b32 v12, 3, v1")
    I("v_lshlrev_b32 v13, 8, v12"); I("v_lshl_add_u32 v13, v2, 4, v13"); I(f"v_add_u32 v13, {LDS_Q}, v13")
    I(f"s_lshl_b32 s34, {sW}, 2"); I(f"s_add_u32 s34, s34, {LDS_MX}")
    I("v_lshl_add_u32 v14, v12, 5, s34")
    I("v_lshlrev_b32 v12, 5, v12"); I(f"v_add_u32 v12, {LDS_MX}, v12")
    I("s_waitcnt vmcnt(8)")
    stamp(2)
    for T in range(2):
        for s in range(4):
            r = VKF + 16 * T + 4 * s
            I(f"ds_read_b128 v[{r}:{r+3}], v{8+s} offset:{4096*T}")
    flag_wait(F_Q, 2)
    stamp(3)
    I(f"ds_read_b32 v3, {vFLG} offset:60")
    for hs in range(2):
        for s in range(4):
            r = VQF + 16 * hs + 4 * s
            I(f"ds_read_b128 v[{r}:{r+3}], v13 offset:{512*hs+64*s}")
    I("s_waitcnt lgkmcnt(4)")
    I(f"v_readfirstlane_b32 {sT}, v3")
    for hs in range(2):
        if hs == 1: I("s_waitcnt lgkmcnt(0)")
        for s in range(4):
            for T in range(2):
                acc = 16 + 8 * hs + 4 * T
                kr = VKF + 16 * T + 4 * s; qr = VQF + 16 * hs + 4 * s
                I(f"v_mfma_f32_16x16x32_bf16 v[{acc}:{acc+3}], v[{kr}:{kr+3}], v[{qr}:{qr+3}], {'0' if s == 0 else f'v[{acc}:{acc+3}]'}")
    make_masks(8, "v1", "v3")
    I(f"s_mov_b32 s34, {SCALE:#x}")
    for j in range(8):
        a = 16 + 2 * j
        I(f"v_cvt_pk_bf16_f32 v3, v{a}, v{a+1}")
        I(f"v_lshlrev_b32 v{a}, 16, v3"); I(f"v_and_b32 v{a+1}, 0xffff0000, v3")
        I(f"v_mul_f32 v{a}, s34, v{a}"); I(f"v_mul_f32 v{a+1}, s34, v{a+1}")
        I(f"v_cvt_pk_bf16_f32 v3, v{a}, v{a+1}")
        I(f"v_lshlrev_b32 v{a}, 16, v3"); I(f"v_and_b32 v{a+1}, 0xffff0000, v3")
    VM = 160
    for hs in range(2):
        a = 16 + 8 * hs
        I(f"v_max3_f32 v{VM+hs}, v{a}, v{a+1}, v{a+2}")
        I(f"v_max3_f32 v{VM+hs}, v{VM+hs}, v{a+3}, v{a+4}")
        I(f"v_max3_f32 v{VM+hs}, v{VM+hs}, v{a+5}, v{a+6}")
        I(f"v_max_f32 v{VM+hs}, v{VM+hs}, v{a+7}")
    for hs in range(2):
        allreduce_rows(f"v{VM+hs}", f"v{VM+2+hs}", "v_max_f32")
    I(f"ds_write_b32 v14, v{VM}"); I(f"ds_write_b32 v14, v{VM+1} offset:64")
    flag_inc(F_MX)
    flag_wait(F_MX, 8)
    for hs in range(2):
        I(f"ds_read_b128 v[{VKF+8*hs}:{VKF+8*hs+3}], v12 offset:{64*hs}")
        I(f"ds_read_b128 v[{VKF+8*hs+4}:{VKF+8*hs+7}], v12 offset:{64*hs+16}")
    I(f"s_lshr_b32 s34, {sW}, 1"); I("s_lshl_b32 s34, s34, 5"); I(f"s_add_u32 s34, s34, {LDS_MX}")
    I("v_mov_b32 v13, s34")
    I(f"ds_read_b128 v[{VKF+16}:{VKF+19}], v13"); I(f"ds_read_b128 v[{VKF+20}:{VKF+23}], v13 offset:16")
    I("s_waitcnt lgkmcnt(0)")
    for k, dst in ((0, VM), (8, VM + 1), (16, VM + 6)):
        a = VKF + k
        I(f"v_max3_f32 v{dst}, v{a}, v{a+1}, v{a+2}")
        I(f"v_max3_f32 v{dst}, v{dst}, v{a+3}, v{a+4}")
        I(f"v_max3_f32 v{dst}, v{dst}, v{a+5}, v{a+6}")
        I(f"v_max_f32 v{dst}, v{dst}, v{a+7}")
    I(f"s_mov_b32 s34, {LOG2E:#x}")
    for hs in range(2):
        for j in range(8):
            a = 16 + 8 * hs + j
            I(f"v_sub_f32 v{a}, v{a}, v{VM+hs}"); I(f"v_mul_f32 v{a}, s34, v{a}")
        for j in range(8):
            a = 16 + 8 * hs + j
            I(f"v_exp_f32 v{a}, v{a}")
    for hs in range(2):
        a = 16 + 8 * hs; l = VM + 4 + hs; t = VM + 2 + hs
        I(f"v_add_f32 v{l}, v{a}, v{a+1}"); I(f"v_add_f32 v{t}, v{a+2}, v{a+3}")
        I(f"v_add_f32 v{l}, v{l}, v{a+4}"); I(f"v_add_f32 v{t}, v{t}, v{a+5}")
        I(f"v_add_f32 v{l}, v{l}, v{a+6}"); I(f"v_add_f32 v{t}, v{t}, v{a+7}")
        I(f"v_add_f32 v{l}, v{l}, v{t}")
    for hs in range(2):
        allreduce_rows(f"v{VM+4+hs}", f"v{VM+2+hs}", "v_add_f32")
    I(f"ds_write_b32 v14, v{VM+4} offset:{LDS_L-LDS_MX}"); I(f"ds_write_b32 v14, v{VM+5} offset:{LDS_L-LDS_MX+64}")
    for j in range(8):
        T, r = j // 4, j % 4
        for hs in range(2):
            a = 16 + 8 * hs + 4 * T + r
            I(f"v_cvt_pk_bf16_f32 v{a}, v{a}, v{a}")
            for i in range(4):
                I(f"v_and_b32 v{VKF+4*(2*j+hs)+i}, v{a}, v{8+i}")
    stamp(4)
    I(f"s_lshl_b32 s34, {sW}, 11"); I(f"s_add_u32 s34, s34, {LDS_OP}")
    I("v_lshrrev_b32 v3, 1, v2"); I("v_lshlrev_b32 v12, 9, v3"); I("v_lshl_add_u32 v12, v1, 5, v12")
    I("v_and_b32 v3, 1, v2"); I("v_lshl_add_u32 v12, v3, 4, v12"); I("v_add_u32 v12, s34, v12")
    I(f"s_lshl_b32 s34, {sW}, 8"); I(f"s_add_u32 s34, s34, {LDS_OP}")
    I("v_lshl_add_u32 v14, v0, 2, s34")
    I(f"v_add_u32 v13, {LDS_L-LDS_MX}, v13")
    I(f"s_lshl_b32 s34, {sB}, 3"); I(f"s_add_u32 s34, s34, {sKVH}"); I("s_lshl_b32 s34, s34, 3"); I(f"s_add_u32 s34, s34, {sW}")
    I("s_lshl_b32 s34, s34, 3"); I(f"s_add_u32 s34, s34, {sSP}")
    I("s_lshl_b32 s35, s34, 9"); I(f"s_add_u32 s35, s35, {WS_O}")
    I("v_lshl_add_u32 v24, v0, 3, s35")
    I("s_lshl_b32 s35, s34, 4"); I(f"s_add_u32 s35, s35, {WS_OS}")
    I("v_mov_b32 v25, s35")
    I(f"s_lshl_b32 s34, {sB}, 18"); I(f"s_lshl_b32 s35, {sW}, 15"); I("s_add_u32 s34, s34, s35")
    I(f"s_lshl_b32 s35, {sI}, 6"); I("s_add_u32 s34, s34, s35"); I(f"s_add_u32 s34, s34, {WS_F}")
    I("v_and_b32 v3, 7, v1")
    eta_setup("v26", "v3", "v2", "v27", "s34")
    if rot: I(f"s_lshl_b32 s43, {sB}, 1")
    else: I("s_mov_b32 s43, 0")
    def wo_issue(u):
        I(f"s_add_u32 s34, s43, {u}"); I("s_and_b32 s34, s34, 7"); I("s_lshl_b32 s34, s34, 10")
        I(f"buffer_load_dwordx4 v[{VWO+4*u}:{VWO+4*u+3}], v4, s[36:39], s34 offen nt")
    NWO_EARLY = 6
    issued = 0
    for j in range(8):
        if j < NWO_EARLY:
            wo_issue(j); issued += 1
        I(f"s_waitcnt vmcnt({7-j+issued})")
        for hs in range(2):
            acc = 16 + 4 * hs
            ar = VKF + 4 * (2 * j + hs)
            I(f"v_mfma_f32_16x16x32_bf16 v[{acc}:{acc+3}], v[{ar}:{ar+3}], v[{VV+4*j}:{VV+4*j+3}], {'0' if j == 0 else f'v[{acc}:{acc+3}]'}")
    stamp(5)
    I("ds_write_b128 v12, v[16:19]"); I("ds_write_b128 v12, v[20:23] offset:1024")
    flag_inc(F_OP)
    flag_wait(F_OP, 8)
    for wv in range(8):
        I(f"ds_read_b32 v{VKF+wv}, v14 offset:{2048*wv}")
    I(f"ds_read_b128 v[{VKF+8}:{VKF+11}], v13"); I(f"ds_read_b128 v[{VKF+12}:{VKF+15}], v13 offset:16")
    I(f"v_mov_b32 v17, {sT}"); I(f"v_mov_b32 v21, {sT}"); I(f"v_mov_b32 v23, {sT}"); I(f"v_mov_b32 v20, v{VM+6}")
    I("s_waitcnt lgkmcnt(2)")
    a = VKF
    I(f"v_add_f32 v16, v{a}, v{a+1}"); I(f"v_add_f32 v18, v{a+2}, v{a+3}"); I(f"v_add_f32 v19, v{a+4}, v{a+5}"); I(f"v_add_f32 v22, v{a+6}, v{a+7}")
    I("v_add_f32 v16, v16, v18"); I("v_add_f32 v19, v19, v22"); I("v_add_f32 v16, v16, v19")
    I(f"global_store_dwordx2 v24, v[16:17], s[{pWS}:{pWS+1}] sc1")
    I("s_waitcnt lgkmcnt(0)")
    a = VKF + 8
    I(f"v_add_f32 v22, v{a}, v{a+1}"); I(f"v_add_f32 v18, v{a+2}, v{a+3}"); I(f"v_add_f32 v19, v{a+4}, v{a+5}"); I(f"v_add_f32 v3, v{a+6}, v{a+7}")
    I("v_add_f32 v22, v22, v18"); I("v_add_f32 v19, v19, v3"); I("v_add_f32 v22, v22, v19")
    I("s_mov_b64 exec, 1")
    I(f"global_store_dwordx4 v25, v[20:23], s[{pWS}:{pWS+1}] sc1")
    I("s_mov_b64 exec, -1")
    stamp(6)
    for u in range(NWO_EARLY, 8): wo_issue(u)
    flag_wait(F_O, 1)
    stamp(7)
    I(f"ds_read_b128 v[{VKF}:{VKF+3}], v15"); I(f"ds_read_b128 v[{VKF+4}:{VKF+7}], v15 offset:16")
    I("s_waitcnt lgkmcnt(0)")
    for u in range(8):
        for i in range(4):
            I(f"v_and_b32 v{VQF+4*u+i}, v{VKF+u}, v{8+i}")
    I("s_waitcnt vmcnt(0)")
    stamp(8)
    for u in range(8):
        I(f"v_mfma_f32_16x16x32_bf16 v[28:31], v[{VQF+4*u}:{VQF+4*u+3}], v[{VWO+4*u}:{VWO+4*u+3}], {'0' if u == 0 else 'v[28:31]'}")
    eta_combine_publish(28, 32, "v26", pWS, 0)
    stamp(9)
    dump_stamps()
    e.label("L_end")
    I("s_endpgm")

    e.raw('.section .rodata,"a"'); e.raw(".p2align 6"); e.raw(f".amdhsa_kernel {KN}")
    e.raw("  .amdhsa_next_free_vgpr 168"); e.raw("  .amdhsa_next_free_sgpr 102"); e.raw("  .amdhsa_accum_offset 168")
    e.raw("  .amdhsa_group_segment_fixed_size 0"); e.raw("  .amdhsa_kernarg_size 104"); e.raw("  .amdhsa_user_sgpr_count 2")
    e.raw("  .amdhsa_user_sgpr_kernarg_segment_ptr 1"); e.raw("  .amdhsa_system_sgpr_workgroup_id_x 1")
    e.raw("  .amdhsa_float_denorm_mode_32 3")
    e.raw(".end_amdhsa_kernel")
    return e.text()

if __name__ == "__main__":
    open("k1.s", "w").write(gen())
    open("k1s.s", "w").write(gen(stamps=True))
```

```python
import sys, struct, math
from emit import Emit

KN = "recurrent_scan__sliding_block_cached__mixer_channel_mlp__decode_kernel"

LDS_K = 0
LDS_WQ = 65536
LDS_OP = LDS_WQ
LDS_WO = 81920
LDS_W1 = 98304
LDS_W2 = 106496
LDS_XN = 114688
LDS_Y = 118784
LDS_P = 122880
LDS_Q = 126976
LDS_MX = 128000
LDS_L = 128064
LDS_O = 128128
LDS_HP = 129152
LDS_G = 129664
LDS_ZP = 129792
LDS_FP = 130304
LDS_FLG = 130816
LDS_TOTAL = 130944
F_C1, F_C2, F_A, F_Q, F_K, F_P, F_Z, F_HP, F_W, F_VI, F_OP, F_O, F_G, F_F = range(14)

WS_Q = 0x10000
WS_QP = 0x380000
WS_QC = 0x3c0000
WS_H = 0x40000
WS_HF = 0x80000
WS_O = 0x100000
WS_OS = 0x180000
WS_F = 0x200000
WS_Z = 0x280000
WS_FF = 0x300000
WS_DBG = 0x800000

LOG2E = 0x3fb8aa3b
SCALE = 0x3db504f3
f2u = lambda x: struct.unpack("<I", struct.pack("<f", x))[0]

def gen(stamps=False, W=3, order="AKKKKKKKKVVVVVVVV", post="OOB", gsleep=2, oflag=6, fflag=56, dbg=0, qsleep=2, wqrot=True, warm=0, psleep=0, zdelay=False, W0=3, wfun=None, swarm=True, spoll=True, cpf=True, reord=True, q1s=0, q2s=0, qis=0, zgate=8, fgate=False, dry=False, latebar=True, pbo=True, ored2=True, eflag=True):
    e = Emit(); I = e.I
    uid = [0]
    def L(prefix):
        uid[0] += 1
        return f"L_{prefix}_{uid[0]}"
    hdr = open("recurrent_scan__sliding_block_cached__mixer_channel_mlp__decode.s.ref").read().split("; Override launch")[0]
    e.raw(hdr.rstrip())
    e.raw(f"; @launch grid=(256,1,1) block=(768,1,1) lds={LDS_TOTAL}")
    e.raw('.amdgcn_target "amdgcn-amd-amdhsa--gfx950"')
    e.raw(".text"); e.raw(f".globl {KN}"); e.raw(".p2align 8"); e.raw(f".type {KN},@function"); e.raw(f"{KN}:")

    sWAVE, sKVH, sSP, sB, sI = "s3", "s4", "s5", "s6", "s7"
    pX, pK, pV, pWQ, pWO, pBX, pW1, pB1 = [(8 + 2 * j) for j in range(8)]
    pW2, pB2, pOUT, pDBG = 24, 26, 28, 30
    pWS = 32
    WSP = f"s[{pWS}:{pWS+1}]"
    sT = "s34"
    tA, tB, tC, tD = "s35", "s18", "s19", "s30"
    sRHO = "s31"
    VST = "v167"
    def stamp(idx):
        if not stamps: return
        if stamps == 2 and idx not in (0, 14): return
        I("s_memrealtime s[100:101]")
        I("s_waitcnt lgkmcnt(0)")
        I(f"v_writelane_b32 {VST}, s100, {idx}")
    def dump_stamps():
        if not stamps: return
        I(f"s_mul_i32 {tA}, s2, 12"); I(f"s_add_u32 {tA}, {tA}, {sWAVE}"); I(f"s_lshl_b32 {tA}, {tA}, 6"); I(f"s_add_u32 {tA}, {tA}, {WS_DBG}")
        I(f"v_lshl_add_u32 v4, v0, 2, {tA}")
        I("s_mov_b64 exec, 0xffff")
        I(f"global_store_dword v4, {VST}, {WSP}")
        I("s_mov_b64 exec, -1")

    def srd(dst, ptr, off_sgpr, size):
        I(f"s_add_u32 s{dst}, s{ptr}, {off_sgpr}"); I(f"s_addc_u32 s{dst+1}, s{ptr+1}, 0"); I(f"s_and_b32 s{dst+1}, s{dst+1}, 0xffff")
        I(f"s_mov_b32 s{dst+2}, {size}"); I(f"s_mov_b32 s{dst+3}, 0x20000")

    vFLG, vONE, vTMPF = "v5", "v6", "v7"
    DRY = [False]
    def masked(mask, instrs):
        sk = None
        if DRY[0]:
            sk = L("dsk"); I(f"s_cbranch_execz {sk}")
        for m, ins in zip(mask, instrs):
            I(f"s_mov_b64 exec, {m}")
            I(ins)
        I("s_mov_b64 exec, -1")
        if sk: e.label(sk)
    def flag_inc(f, wait=True):
        if wait: I("s_waitcnt lgkmcnt(0)")
        masked(["1"], [f"ds_add_u32 {vFLG}, {vONE} offset:{4*f}"])
    def flag_wait(f, n):
        lp = L("fw")
        if DRY[0]:
            sk = L("dsk"); I(f"s_cbranch_execz {sk}")
            DRY[0] = False; flag_wait(f, n); DRY[0] = True
            e.label(sk)
            return
        e.label(lp)
        I(f"ds_read_b32 {vTMPF}, {vFLG} offset:{4*f}")
        I("s_waitcnt lgkmcnt(0)")
        I(f"v_readfirstlane_b32 s100, {vTMPF}")
        I(f"s_cmp_lt_u32 s100, {n}")
        I(f"s_cbranch_scc1 {lp}")

    def allreduce_rows(vs, ts, op):
        if isinstance(vs, str): vs, ts = [vs], [ts]
        for sw in ("v_permlane16_swap_b32", "v_permlane32_swap_b32"):
            for v, t in zip(vs, ts): I(f"v_mov_b32 {t}, {v}")
            for v, t in zip(vs, ts): I(f"{sw} {v}, {t}")
            for v, t in zip(vs, ts): I(f"{op} {v}, {v}, {t}")
    def allreduce_wave_add(v, t):
        I(f"v_add_f32_dpp {v}, {v}, {v} quad_perm:[1,0,3,2] row_mask:0xf bank_mask:0xf")
        I(f"v_add_f32_dpp {v}, {v}, {v} quad_perm:[2,3,0,1] row_mask:0xf bank_mask:0xf")
        I(f"v_add_f32_dpp {v}, {v}, {v} row_half_mirror row_mask:0xf bank_mask:0xf")
        I(f"v_add_f32_dpp {v}, {v}, {v} row_mirror row_mask:0xf bank_mask:0xf")
        allreduce_rows(v, t, "v_add_f32")
    def allreduce_mod4(v, t, op):
        I(f"{op}_dpp {v}, {v}, {v} row_ror:4 row_mask:0xf bank_mask:0xf")
        I(f"{op}_dpp {v}, {v}, {v} row_ror:8 row_mask:0xf bank_mask:0xf")
        allreduce_rows(v, t, op)
    def bf16r(dst, src):
        I(f"v_cvt_pk_bf16_f32 {dst}, {src}, {src}")
        I(f"v_and_b32 {dst}, 0xffff0000, {dst}")
    def round4(a, t):
        I(f"v_cvt_pk_bf16_f32 v{t}, v{a}, v{a+1}"); I(f"v_cvt_pk_bf16_f32 v{t+1}, v{a+2}, v{a+3}")
        I(f"v_lshlrev_b32 v{a}, 16, v{t}"); I(f"v_and_b32 v{a+1}, 0xffff0000, v{t}")
        I(f"v_lshlrev_b32 v{a+2}, 16, v{t+1}"); I(f"v_and_b32 v{a+3}, 0xffff0000, v{t+1}")

    def layernorm(src, f, t):
        for j in range(4):
            I(f"v_lshlrev_b32 v{f+2*j}, 16, v{src+j}")
            I(f"v_and_b32 v{f+2*j+1}, 0xffff0000, v{src+j}")
        s, u, m, w = f"v{t}", f"v{t+1}", f"v{t+2}", f"v{t+3}"
        I(f"v_add_f32 {s}, v{f}, v{f+1}"); I(f"v_add_f32 {u}, v{f+2}, v{f+3}")
        I(f"v_add_f32 {m}, v{f+4}, v{f+5}"); I(f"v_add_f32 {w}, v{f+6}, v{f+7}")
        I(f"v_add_f32 {s}, {s}, {u}"); I(f"v_add_f32 {m}, {m}, {w}"); I(f"v_add_f32 {s}, {s}, {m}")
        allreduce_wave_add(s, u)
        I(f"v_mul_f32 {m}, 0x3b000000, {s}")
        I(f"v_sub_f32 {u}, v{f}, {m}"); I(f"v_mul_f32 {s}, {u}, {u}")
        I(f"v_sub_f32 {u}, v{f+1}, {m}"); I(f"v_mul_f32 {w}, {u}, {u}")
        for j in range(2, 8):
            I(f"v_sub_f32 {u}, v{f+j}, {m}"); I(f"v_fmac_f32 {s if j % 2 == 0 else w}, {u}, {u}")
        I(f"v_add_f32 {s}, {s}, {w}")
        allreduce_wave_add(s, u)
        I(f"v_mul_f32 {s}, 0x3b000000, {s}")
        bf16r(m, m)
        bf16r(s, s)
        I(f"v_add_f32 {s}, 0x3727c5ac, {s}")
        bf16r(s, s)
        I(f"v_sqrt_f32 {s}, {s}")
        bf16r(s, s)
        I(f"v_rcp_f32 {s}, {s}")
        for j in range(8): I(f"v_sub_f32 v{f+j}, v{f+j}, {m}")
        for j in range(4): I(f"v_cvt_pk_bf16_f32 v{src+j}, v{f+2*j}, v{f+2*j+1}")
        for j in range(4):
            I(f"v_lshlrev_b32 v{f+2*j}, 16, v{src+j}"); I(f"v_and_b32 v{f+2*j+1}, 0xffff0000, v{src+j}")
        for j in range(8): I(f"v_mul_f32 v{f+j}, v{f+j}, {s}")
        for j in range(4): I(f"v_cvt_pk_bf16_f32 v{src+j}, v{f+2*j}, v{f+2*j+1}")

    def tag_setup(vem):
        for r in range(4): I(f"s_bfe_u32 s{44+r}, {sT}, {(8 << 16) | (8 * r):#x}")
        I(f"v_mov_b32 {vem}, 0xffffff00")
        I("s_mov_b32 s48, 0x0c0c0400"); I("s_mov_b32 s49, 0x05040100")
    def tag_embed(a, vem, dst=None):
        dst = a if dst is None else dst
        for r in range(4): I(f"v_and_or_b32 v{dst+r}, v{a+r}, {vem}, s{44+r}")
    def gather(loads, mbase=62, tt=(60, 61)):
        for j, ld in enumerate(loads):
            I(f"s_mov_b64 s[{mbase+2*j}:{mbase+2*j+1}], {ld[3] if ld[3] is not None else -1}")
        I("s_mov_b32 s59, 0")
        lp = L("g"); done = L("gd")
        e.label(lp)
        for j, (d, vo, imm, im, kind) in enumerate(loads):
            sk = L("gs")
            I(f"s_mov_b64 exec, s[{mbase+2*j}:{mbase+2*j+1}]")
            I(f"s_cbranch_execz {sk}")
            I(f"global_load_dwordx4 v[{d}:{d+3}], {vo}, {WSP} offset:{imm} sc1")
            e.label(sk)
        I("s_mov_b64 exec, -1")
        I("s_waitcnt vmcnt(0)")
        I("s_mov_b64 s[56:57], 0")
        for j, (d, vo, imm, im, kind) in enumerate(loads):
            if kind == "t":
                I(f"v_cmp_ne_u32 vcc, {sT}, v{d+1}")
                I(f"v_cmp_ne_u32 s[54:55], {sT}, v{d+3}")
                I("s_or_b64 s[54:55], s[54:55], vcc")
            else:
                I(f"v_perm_b32 v{tt[0]}, v{d+1}, v{d}, s48")
                I(f"v_perm_b32 v{tt[1]}, v{d+3}, v{d+2}, s48")
                I(f"v_perm_b32 v{tt[0]}, v{tt[1]}, v{tt[0]}, s49")
                I(f"v_cmp_ne_u32 s[54:55], {sT}, v{tt[0]}")
            I(f"s_and_b64 s[{mbase+2*j}:{mbase+2*j+1}], s[{mbase+2*j}:{mbase+2*j+1}], s[54:55]")
            I(f"s_or_b64 s[56:57], s[56:57], s[{mbase+2*j}:{mbase+2*j+1}]")
        I("s_add_u32 s59, s59, 1")
        I("s_cmp_ge_u32 s59, 0x40000")
        I(f"s_cbranch_scc1 {done}")
        I("s_cmp_lg_u64 s[56:57], 0")
        if gsleep:
            I(f"s_cbranch_scc0 {done}")
            I(f"s_sleep {gsleep}")
            I(f"s_branch {lp}")
        else:
            I(f"s_cbranch_scc1 {lp}")
        e.label(done)

    def make_masks(mb, vn, t):
        I(f"v_and_b32 {t}, 1, {vn}")
        I(f"v_cmp_eq_u32 vcc, 1, {t}")
        I(f"v_mov_b32 v{mb}, 0xffff")
        I(f"v_mov_b32 v{mb+1}, 0xffff0000")
        I(f"v_cndmask_b32 v{mb+3}, v{mb}, v{mb+1}, vcc")
        I(f"v_bfe_u32 {t}, {vn}, 1, 2")
        for i in range(4):
            I(f"v_cmp_eq_u32 vcc, {i}, {t}")
            I(f"v_cndmask_b32 v{mb+i}, 0, v{mb+3}, vcc")
    def eta_publish(acc, t, vaddr, imm, vem):
        for r in range(4): I(f"v_mov_b32 v{t+r}, v{acc+r}")
        for r in range(4): I(f"v_permlane32_swap_b32 v{acc+r}, v{t+r}")
        for r in range(4): I(f"v_add_f32_dpp v{acc+r}, v{t+r}, v{acc+r} row_ror:8 row_mask:0xf bank_mask:0xf")
        tag_embed(acc, vem)
        I("s_mov_b64 exec, 0x00ff00ff")
        I(f"global_store_dwordx4 {vaddr}, v[{acc}:{acc+3}], {WSP} offset:{imm} sc1")
        I("s_mov_b64 exec, -1")
    def eta_addr(vaddr, t, sbase):
        I(f"v_bfe_u32 {t}, v1, 2, 1"); I(f"v_lshlrev_b32 {vaddr}, 13, {t}")
        I(f"v_and_b32 {t}, 3, v1"); I(f"v_lshl_add_u32 {vaddr}, {t}, 5, {vaddr}")
        I(f"v_and_b32 {t}, 1, v2"); I(f"v_lshl_add_u32 {vaddr}, {t}, 4, {vaddr}")
        I(f"v_add_u32 {vaddr}, {sbase}, {vaddr}")
    def reduce_mod8(a, t):
        for r in range(4): I(f"v_add_f32_dpp v{a+r}, v{a+r}, v{a+r} row_ror:8 row_mask:0xf bank_mask:0xf")
        allreduce_rows([f"v{a+r}" for r in range(4)], [f"v{t+r}" for r in range(4)], "v_add_f32")
    def reduce_par(a, t):
        for m in ("quad_perm:[2,3,0,1]", "row_ror:4", "row_ror:8"):
            for r in range(4): I(f"v_add_f32_dpp v{a+r}, v{a+r}, v{a+r} {m} row_mask:0xf bank_mask:0xf")
        allreduce_rows([f"v{a+r}" for r in range(4)], [f"v{t+r}" for r in range(4)], "v_add_f32")

    I("s_cmp_ge_u32 s2, 256")
    I("s_cbranch_scc1 L_end")
    if stamps: I(f"v_mov_b32 {VST}, 0")
    stamp(0)
    I("s_load_dwordx16 s[8:23], s[0:1], 0")
    I("s_load_dwordx8 s[24:31], s[0:1], 64")
    I("s_load_dwordx2 s[32:33], s[0:1], 96")
    I("v_lshrrev_b32 v1, 6, v0")
    I("v_and_b32 v0, 63, v0")
    I(f"v_readfirstlane_b32 {sWAVE}, v1")
    if cpf:
        I("s_getpc_b64 s[36:37]")
        e.label("L_pcref")
        I(f"s_sub_u32 s36, s36, L_pcref-{KN}"); I("s_subb_u32 s37, s37, 0")
        I("s_lshr_b32 s38, s2, 3"); I("s_lshl_b32 s38, s38, 2"); I(f"s_and_b32 s39, {sWAVE}, 3"); I("s_add_u32 s38, s38, s39"); I("s_lshl_b32 s38, s38, 7")
        I(f"s_min_u32 s38, s38, L_end-{KN}")
        I("v_mov_b32 v166, s38")
        I("global_load_dword v166, v166, s[36:37]")
    I("v_and_b32 v1, 15, v0")
    I("v_lshrrev_b32 v2, 4, v0")
    I(f"s_and_b32 {sKVH}, s2, 7")
    I(f"s_bfe_u32 {sSP}, s2, 0x30003")
    I(f"s_lshr_b32 {sB}, s2, 6")
    I(f"s_and_b32 {sI}, s2, 63")
    I(f"v_mov_b32 {vFLG}, {LDS_FLG}")
    I(f"v_mov_b32 {vONE}, 1")
    I(f"s_cmp_lg_u32 {sWAVE}, 0")
    I("s_cbranch_scc1 L_noinit")
    I("v_and_b32 v7, 31, v0"); I("v_lshlrev_b32 v7, 2, v7")
    I(f"v_add_u32 v7, {LDS_FLG}, v7")
    I("v_mov_b32 v8, 0")
    I("ds_write_b32 v7, v8")
    e.label("L_noinit")
    I("s_waitcnt lgkmcnt(0)")
    if not latebar: I("s_barrier")
    I(f"s_bfe_u32 {sRHO}, s2, 0x20003"); I(f"s_bfe_u32 {tA}, s2, 0x10005"); I(f"s_lshl_b32 {tA}, {tA}, 4"); I(f"s_or_b32 {sRHO}, {sRHO}, {tA}")
    I(f"s_cmp_ge_u32 {sWAVE}, 4")
    I("s_cbranch_scc1 L_worker")

    if dbg == 1: I("s_branch L_dbg_exit")
    I("s_setprio 3")
    I(f"s_load_dword {sT}, {WSP}, 0")
    I(f"s_lshl_b32 {tA}, {sWAVE}, 10")
    I(f"v_lshl_add_u32 v3, v0, 4, {tA}")
    I(f"global_load_dwordx4 v[12:15], v3, s[{pX}:{pX+1}]")
    I(f"s_lshl_b32 {tA}, {sB}, 7"); I(f"s_lshl_b32 {tB}, {sWAVE}, 5"); I(f"s_add_u32 {tA}, {tA}, {tB}"); I(f"s_lshl_b32 {tA}, {tA}, 13")
    I(f"s_lshl_b32 {tB}, {sKVH}, 10"); I(f"s_add_u32 {tA}, {tA}, {tB}")
    I(f"s_lshl_b32 {tB}, {sSP}, 7"); I(f"s_add_u32 {tA}, {tA}, {tB}")
    srd(36, pWQ, tA, 31 * 8192 + 128)
    I("v_lshrrev_b32 v8, 3, v0"); I("v_and_b32 v9, 7, v0")
    I("v_lshlrev_b32 v8, 13, v8"); I("v_lshl_add_u32 v8, v9, 4, v8")
    I(f"s_lshl_b32 {tA}, {sWAVE}, 12"); I(f"s_add_u32 {tA}, {tA}, {LDS_WQ}")
    for t in range(4):
        I(f"s_add_u32 m0, {tA}, {1024*t}")
        I(f"s_mov_b32 {tD}, {65536*t}")
        I(f"buffer_load_dwordx4 v8, s[36:39], {tD} offen nt lds")
    if latebar: I("s_barrier")
    I(f"v_add_u32 v3, {LDS_XN}, v3")
    I("v_lshrrev_b32 v8, 2, v1"); I("v_lshl_add_u32 v8, v2, 3, v8"); I("v_lshlrev_b32 v8, 7, v8")
    I("v_and_b32 v9, 3, v1"); I("v_lshl_add_u32 v8, v9, 3, v8")
    I(f"s_and_b32 s42, {sWAVE}, 1"); I(f"s_lshl_b32 {tA}, s42, 6")
    I(f"v_add_u32 v8, {tA}, v8")
    I("v_bfe_u32 v11, v1, 2, 1")
    I("v_and_b32 v155, 7, v0")
    I(f"s_lshr_b32 {tB}, {sI}, 2"); I(f"s_lshl_b32 {tB}, {tB}, 6")
    I(f"v_lshl_add_u32 v155, v155, 3, {tB}")
    I(f"s_lshl_b32 {tA}, {sB}, 10")
    I(f"v_add_u32 v154, {tA}, v155")
    I("s_mov_b32 s40, 0xf0f0f0f0"); I("s_mov_b32 s41, 0xf0f0f0f0")
    I(f"s_cmp_ge_u32 {sWAVE}, 2")
    I("s_cbranch_scc1 L_haddr")
    I(f"v_add_u32 v8, {LDS_WQ}, v8")
    I(f"s_lshr_b32 {tC}, {sSP}, 1"); I(f"s_and_b32 {tD}, {sSP}, 1")
    I(f"s_lshl_b32 {tA}, {sKVH}, 15"); I(f"s_lshl_b32 {tB}, {tC}, 11"); I(f"s_add_u32 {tA}, {tA}, {tB}")
    I(f"s_lshl_b32 {tB}, {sB}, 9"); I(f"s_add_u32 {tA}, {tA}, {tB}")
    I(f"s_lshl_b32 {tB}, {tD}, 8"); I(f"s_add_u32 {tA}, {tA}, {tB}")
    I(f"s_lshl_b32 {tB}, s42, 7"); I(f"s_add_u32 {tA}, {tA}, {tB}"); I(f"s_add_u32 {tA}, {tA}, {WS_QP}")
    I("v_lshlrev_b32 v10, 13, v9"); I("v_lshl_add_u32 v10, v2, 4, v10"); I("v_lshl_add_u32 v10, v11, 6, v10"); I(f"v_add_u32 v10, {tA}, v10")
    I(f"s_lshl_b32 {tA}, {sKVH}, 11"); I(f"s_lshl_b32 {tB}, {tC}, 7"); I(f"s_add_u32 {tA}, {tA}, {tB}")
    I(f"s_lshl_b32 {tB}, {sB}, 5"); I(f"s_add_u32 {tA}, {tA}, {tB}")
    I(f"s_lshl_b32 {tB}, {tD}, 4"); I(f"s_add_u32 {tA}, {tA}, {tB}")
    I(f"s_lshl_b32 {tB}, s42, 3"); I(f"s_add_u32 {tA}, {tA}, {tB}"); I(f"s_add_u32 {tA}, {tA}, {WS_QC}")
    I(f"v_lshl_add_u32 v11, v9, 9, {tA}")
    I("v_lshlrev_b32 v9, 10, v9"); I("v_lshl_add_u32 v9, v2, 4, v9")
    I(f"s_lshl_b32 {tA}, {sB}, 8"); I(f"s_add_u32 {tA}, {tA}, {LDS_XN}")
    I(f"v_add_u32 v9, {tA}, v9")
    I("s_branch L_addr_done")
    e.label("L_haddr")
    I(f"v_add_u32 v8, {LDS_W1}, v8")
    I(f"s_mul_i32 {tA}, s2, 9363"); I(f"s_lshr_b32 {tA}, {tA}, 18")
    I(f"s_mul_i32 {tB}, {tA}, 28"); I(f"s_sub_u32 {tB}, s2, {tB}")
    I(f"s_lshl_b32 {tB}, {tB}, 1"); I(f"s_add_u32 {tB}, {tB}, s42")
    I(f"s_lshl_b32 {tC}, {tB}, 12"); I(f"s_lshl_b32 {tD}, {tA}, 9"); I(f"s_add_u32 {tC}, {tC}, {tD}"); I(f"s_add_u32 {tC}, {tC}, {WS_H}")
    I("v_lshlrev_b32 v10, 7, v9"); I("v_lshl_add_u32 v10, v2, 4, v10"); I("v_lshl_add_u32 v10, v11, 6, v10"); I(f"v_add_u32 v10, {tC}, v10")
    I(f"s_lshl_b32 {tB}, {tB}, 6"); I(f"s_lshl_b32 {tD}, {tA}, 2"); I(f"s_add_u32 {tB}, {tB}, {tD}"); I(f"s_add_u32 {tB}, {tB}, {WS_HF}")
    I(f"v_mov_b32 v11, {tB}")
    I("v_lshlrev_b32 v9, 10, v9"); I("v_lshl_add_u32 v9, v2, 4, v9")
    I(f"s_lshl_b32 {tC}, {tA}, 7"); I(f"s_add_u32 {tC}, {tC}, {LDS_Y}")
    I(f"v_add_u32 v9, {tC}, v9")
    e.label("L_addr_done")
    I("s_mov_b32 s94, 0")
    I("s_waitcnt vmcnt(4)")
    stamp(1)
    e.label("L_ln")
    layernorm(12, 16, 24)
    I("s_cmp_eq_u32 s94, 1"); I("s_cbranch_scc1 L_ln_ret1")
    I("s_cmp_eq_u32 s94, 2"); I("s_cbranch_scc1 L_ln_ret2")
    I("ds_write_b128 v3, v[12:15]")
    I("s_mov_b32 s94, 1")
    I(f"s_cmp_ge_u32 {sWAVE}, 2")
    I("s_cbranch_scc1 L_ln")
    I("s_waitcnt vmcnt(0)")
    stamp(2)
    flag_inc(F_C1)
    I(f"s_add_u32 {sT}, {sT}, 0x01010101")
    I(f"v_mov_b32 v29, {sT}")
    flag_wait(F_C1, 4)
    for ks in range(4):
        for tl in range(2):
            r = 32 + 12 * ks + 4 * tl
            I(f"ds_read_b64_tr_b16 v[{r}:{r+1}], v8 offset:{4096*ks+32*tl}")
            I(f"ds_read_b64_tr_b16 v[{r+2}:{r+3}], v8 offset:{4096*ks+32*tl+512}")
        I(f"ds_read_b128 v[{40+12*ks}:{43+12*ks}], v9 offset:{64*ks}")
        if ks == 2:
            I("s_waitcnt lgkmcnt(10)")
            for tl in range(2):
                acc = 16 + 4 * tl
                I(f"v_mfma_f32_16x16x32_bf16 v[{acc}:{acc+3}], v[{32+4*tl}:{35+4*tl}], v[40:43], 0")
    for ks in range(1, 4):
        I(f"s_waitcnt lgkmcnt({5*(3-ks)})")
        for tl in range(2):
            r = 32 + 12 * ks + 4 * tl; acc = 16 + 4 * tl
            I(f"v_mfma_f32_16x16x32_bf16 v[{acc}:{acc+3}], v[{r}:{r+3}], v[{40+12*ks}:{43+12*ks}], v[{acc}:{acc+3}]")
    for r in range(4): I(f"v_cndmask_b32 v{16+r}, v{16+r}, v{20+r}, s[40:41]")
    I("s_mov_b32 s40, 0x00ff00ff"); I("s_mov_b32 s41, 0x00ff00ff")
    masked(["s[40:41]"], [f"global_store_dwordx4 v10, v[16:19], {WSP} sc1"])
    I("v_xor_b32 v20, v16, v17"); I("v_xor_b32 v21, v18, v19"); I("v_xor_b32 v20, v20, v21")
    I("v_xor_b32_dpp v20, v20, v20 row_ror:4 row_mask:0xf bank_mask:0xf")
    allreduce_rows("v20", "v21", "v_xor_b32")
    I("v_xor_b32 v28, v20, v29")
    masked(["15"], [f"global_store_dwordx2 v11, v[28:29], {WSP} sc1"])
    I(f"ds_write_b32 {vFLG}, v29 offset:60")

    stamp(3)
    I("s_mov_b32 s94, 2")
    I("s_branch L_ln")
    e.label("L_ln_ret2")
    I(f"ds_write_b128 v3, v[12:15] offset:{LDS_Y-LDS_XN}")
    flag_inc(F_C2)
    I(f"global_load_dwordx2 v[152:153], v155, s[{pB2}:{pB2+1}]")
    I(f"global_load_dwordx2 v[150:151], v154, s[{pX}:{pX+1}]")

    I("s_branch L_qg")
    e.label("L_ln_ret1")
    I(f"ds_write_b128 v3, v[12:15] offset:{LDS_Y-LDS_XN}")
    flag_inc(F_C2)
    I("s_waitcnt vmcnt(0)")
    stamp(2)
    flag_inc(F_C1, wait=False)
    I(f"s_add_u32 {sT}, {sT}, 0x01010101")
    I("s_cmp_ge_u32 s2, 224")
    I("s_cbranch_scc1 L_hdone")
    I(f"v_mov_b32 v12, {sT}")
    tag_setup("v13")
    flag_wait(F_C2, 4)
    flag_wait(F_A, 8)
    for s_ in range(2):
        for tl in range(2):
            r = 32 + 12 * s_ + 4 * tl
            I(f"ds_read_b64_tr_b16 v[{r}:{r+1}], v8 offset:{4096*s_+32*tl}")
            I(f"ds_read_b64_tr_b16 v[{r+2}:{r+3}], v8 offset:{4096*s_+32*tl+512}")
        I(f"ds_read_b128 v[{40+12*s_}:{43+12*s_}], v9 offset:{64*s_}")
    for s_ in range(2):
        I(f"s_waitcnt lgkmcnt({5*(1-s_)})")
        for tl in range(2):
            r = 32 + 12 * s_ + 4 * tl; acc = 16 + 4 * tl
            I(f"v_mfma_f32_16x16x32_bf16 v[{acc}:{acc+3}], v[{r}:{r+3}], v[{40+12*s_}:{43+12*s_}], {'0' if s_ == 0 else f'v[{acc}:{acc+3}]'}")
    for r in range(4): I(f"v_cndmask_b32 v{16+r}, v{16+r}, v{20+r}, s[40:41]")
    tag_embed(16, "v13")
    I("s_mov_b32 s40, 0x00ff00ff"); I("s_mov_b32 s41, 0x00ff00ff")
    masked(["s[40:41]", "1"], [f"global_store_dwordx4 v10, v[16:19], {WSP} sc1", f"global_store_dword v11, v12, {WSP} sc1"])
    stamp(4)
    e.label("L_hdone")
    if dry:
        I(f"s_cmp_lg_u32 {sWAVE}, 3"); I("s_cbranch_scc1 L_qg")
        I("s_mov_b64 exec, 0")
        I("s_branch L_dry_qk")
        e.label("L_dry_ret")
        I("s_mov_b64 exec, -1")
    e.label("L_qg")
    I(f"s_lshl_b32 {tA}, {sKVH}, 2"); I(f"s_add_u32 {tA}, {tA}, {sB}"); I(f"s_lshl_b32 {tA}, {tA}, 2"); I(f"s_add_u32 {tA}, {tA}, {sWAVE}")
    I(f"s_lshl_b32 {tD}, {tA}, 11"); I(f"s_add_u32 {tD}, {tD}, {WS_QP}")
    I(f"v_lshl_add_u32 v8, v0, 4, {tD}")
    I(f"s_lshl_b32 {tD}, {tA}, 7"); I(f"s_add_u32 {tD}, {tD}, {WS_QC}")
    I("v_lshrrev_b32 v9, 3, v0"); I(f"v_lshl_add_u32 v9, v9, 3, {tD}")
    I(f"s_add_u32 s18, s{pWS}, {tD}"); I(f"s_addc_u32 s19, s{pWS+1}, 0")
    I(f"s_lshl_b32 {tA}, {sWAVE}, 8"); I(f"s_add_u32 {tA}, {tA}, {LDS_Q}")
    I("v_and_b32 v10, 31, v0"); I(f"v_lshl_add_u32 v10, v10, 3, {tA}")
    I(f"s_mov_b32 {tD}, 0")
    e.label("L_qg_poll")
    if qis: I(f"s_sleep {qis}")
    for j in range(2):
        I(f"s_load_dwordx16 s[{36+16*j}:{51+16*j}], s[18:19], {64*j} glc")
    I("s_waitcnt lgkmcnt(0)")
    I("s_and_b64 s[8:9], s[36:37], s[38:39]"); I("s_or_b64 s[10:11], s[36:37], s[38:39]")
    for x in range(2, 16):
        I(f"s_and_b64 s[8:9], s[8:9], s[{36+2*x}:{37+2*x}]"); I(f"s_or_b64 s[10:11], s[10:11], s[{36+2*x}:{37+2*x}]")
    I(f"s_xor_b32 s9, s9, {sT}"); I(f"s_xor_b32 s11, s11, {sT}"); I(f"s_or_b32 {tA}, s9, s11")
    I(f"s_add_u32 {tD}, {tD}, 1"); I(f"s_cmp_ge_u32 {tD}, 0x80000"); I("s_cbranch_scc1 L_qg_data")
    I(f"s_cmp_lg_u32 {tA}, 0"); I("s_cbranch_scc1 L_qg_poll")
    e.label("L_qg_data")
    stamp(9)
    e.label("L_qg_retry")
    I(f"global_load_dwordx4 v[32:35], v8, {WSP} sc1")
    I(f"global_load_dwordx4 v[36:39], v8, {WSP} offset:1024 sc1")
    I(f"global_load_dword v40, v9, {WSP} sc1")
    I(f"global_load_dword v41, v9, {WSP} offset:64 sc1")
    I("s_waitcnt vmcnt(0)")
    for t in range(2):
        r = 32 + 4 * t
        I(f"v_xor_b32 v{42+t}, v{r}, v{r+1}"); I(f"v_xor_b32 v{44+t}, v{r+2}, v{r+3}")
    for t in range(2): I(f"v_xor_b32 v{42+t}, v{42+t}, v{44+t}")
    for m in ("quad_perm:[1,0,3,2]", "quad_perm:[2,3,0,1]", "row_half_mirror"):
        for t in range(2): I(f"v_xor_b32_dpp v{42+t}, v{42+t}, v{42+t} {m} row_mask:0xf bank_mask:0xf")
    for t in range(2): I(f"v_xor_b32 v{42+t}, v{42+t}, v{40+t}")
    I(f"v_cmp_ne_u32 vcc, {sT}, v42"); I(f"v_cmp_ne_u32 s[54:55], {sT}, v43"); I("s_or_b64 s[54:55], s[54:55], vcc")
    I(f"s_add_u32 {tD}, {tD}, 1"); I(f"s_cmp_ge_u32 {tD}, 0x90000"); I("s_cbranch_scc1 L_qg_done")
    I("s_cmp_lg_u64 s[54:55], 0"); I("s_cbranch_scc1 L_qg_retry")
    e.label("L_qg_done")
    e.label("L_dry_qk")
    DRY[0] = dry
    for r in range(4): I(f"v_add_f32 v{32+r}, v{32+r}, v{36+r}")
    for r in range(4): I(f"v_mov_b32 v{36+r}, v{32+r}")
    for r in range(4): I(f"v_permlane32_swap_b32 v{32+r}, v{36+r}")
    for r in range(4): I(f"v_add_f32 v{32+r}, v{32+r}, v{36+r}")
    I("v_cvt_pk_bf16_f32 v16, v32, v33"); I("v_cvt_pk_bf16_f32 v17, v34, v35")
    I("ds_write_b64 v10, v[16:17]")
    flag_inc(F_Q)
    stamp(5)
    if dbg == 6: I("s_branch L_dbg_exit")

    I(f"s_and_b32 {tA}, {sRHO}, 3")
    I(f"v_xor_b32 v13, {tA}, v1")
    I("v_xor_b32 v3, v13, v2")
    I(f"s_lshl_b32 {tA}, {sWAVE}, 14")
    I(f"s_lshr_b32 {tB}, {sRHO}, 4"); I(f"s_lshl_b32 {tB}, {tB}, 12"); I(f"s_add_u32 {tA}, {tA}, {tB}")
    I("v_lshlrev_b32 v8, 8, v13"); I("v_lshl_add_u32 v8, v3, 4, v8"); I(f"v_add_u32 v8, {tA}, v8")
    I("v_xor_b32 v9, 64, v8"); I("v_xor_b32 v10, 0x80, v8"); I("v_xor_b32 v11, 0xc0, v8")
    for s_ in range(4): I(f"v_xor_b32 v{144+s_}, 0x1000, v{8+s_}")
    I("v_and_b32 v3, 3, v1")
    I("v_lshlrev_b32 v12, 8, v3"); I("v_lshl_add_u32 v12, v2, 4, v12"); I(f"v_add_u32 v12, {LDS_Q}, v12")
    I("v_lshrrev_b32 v13, 2, v1")
    I("v_lshlrev_b32 v14, 10, v3"); I("v_lshl_add_u32 v14, v13, 6, v14"); I("v_lshl_add_u32 v14, v2, 4, v14")
    I(f"s_lshl_b32 {tA}, {sWAVE}, 8"); I(f"s_add_u32 {tA}, {tA}, {LDS_P}")
    I(f"v_add_u32 v14, {tA}, v14")
    I(f"s_lshl_b32 {tA}, {sWAVE}, 2"); I(f"s_add_u32 {tA}, {tA}, {LDS_MX}")
    I(f"v_lshl_add_u32 v15, v3, 4, {tA}")
    for rho, m in ((1, 0x00f000f0), (2, 0x0f000f00), (3, 0xf000f000)):
        I(f"s_mov_b32 s{36+2*rho}, {m:#x}"); I(f"s_mov_b32 s{37+2*rho}, {m:#x}")
    flag_wait(F_K, 8)
    stamp(6)
    VKF = 64
    for T in range(4):
        for s in range(4):
            r = VKF + 16 * T + 4 * s
            I(f"ds_read_b128 v[{r}:{r+3}], v{(8 if T % 2 == 0 else 144)+s} offset:{8192*(T//2)}")
    flag_wait(F_Q, 4)
    stamp(7)
    for s in range(4):
        I(f"ds_read_b128 v[{32+4*s}:{35+4*s}], v12 offset:{64*s}")
    for s in range(4):
        I(f"s_waitcnt lgkmcnt({3-s})")
        for T in range(4):
            acc = 16 + 4 * T
            kr = VKF + 16 * T + 4 * s
            I(f"v_mfma_f32_16x16x32_bf16 v[{acc}:{acc+3}], v[{kr}:{kr+3}], v[{32+4*s}:{35+4*s}], {'0' if s == 0 else f'v[{acc}:{acc+3}]'}")
    I(f"s_mov_b32 {tA}, {SCALE:#x}"); I(f"s_mov_b32 {tB}, {LOG2E:#x}")
    for rho in (1, 2, 3):
        for r in range(4):
            I(f"v_cndmask_b32 v{16+r}, v{16+r}, v{16+4*rho+r}, s[{36+2*rho}:{37+2*rho}]")
    round4(16, 20)
    for r in range(4): I(f"v_mul_f32 v{16+r}, {tA}, v{16+r}")
    round4(16, 20)
    I("v_max3_f32 v20, v16, v17, v18"); I("v_max_f32 v20, v20, v19")
    allreduce_mod4("v20", "v21", "v_max_f32")
    for r in range(4): I(f"v_sub_f32 v{16+r}, v{16+r}, v20")
    for r in range(4): I(f"v_mul_f32 v{16+r}, {tB}, v{16+r}")
    for r in range(4): I(f"v_exp_f32 v{16+r}, v{16+r}")
    for r in range(4): I(f"v_cvt_pk_bf16_f32 v{24+r}, v{16+r}, v{16+r}")
    I("ds_write_b128 v14, v[24:27]")
    I("ds_write_b32 v15, v20")
    I("v_add_f32 v22, v16, v17"); I("v_add_f32 v23, v18, v19"); I("v_add_f32 v22, v22, v23")
    allreduce_mod4("v22", "v21", "v_add_f32")
    I(f"ds_write_b32 v15, v22 offset:{LDS_L-LDS_MX}")
    flag_inc(F_P)
    if dry: I("s_cbranch_execz L_dry_ret")
    DRY[0] = False
    stamp(8)
    if dbg == 4: I("s_branch L_dbg_exit")
    if swarm:
        I(f"s_lshl_b32 {tA}, {sWAVE}, 3"); I(f"s_add_u32 {tA}, {tA}, {sKVH}"); I(f"s_lshl_b32 {tA}, {tA}, 3"); I(f"s_add_u32 {tA}, {tA}, {sSP}")
        I(f"s_lshl_b32 {tA}, {tA}, 7"); I(f"s_add_u32 {tA}, {tA}, {WS_OS}")
        I(f"s_load_dword s64, {WSP}, {tA} glc")
        I(f"s_lshl_b32 {tA}, s2, 11"); I(f"s_lshl_b32 {tB}, {sWAVE}, 9"); I(f"s_add_u32 {tA}, {tA}, {tB}"); I(f"s_add_u32 {tA}, {tA}, {WS_F}")
        for j in range(4):
            I(f"s_load_dword s{65+j}, {WSP}, {tA} glc")
            if j < 3: I(f"s_add_u32 {tA}, {tA}, 128")
        I(f"s_lshl_b32 {tA}, s2, 8"); I(f"s_and_b32 {tB}, {sWAVE}, 1"); I(f"s_lshl_b32 {tB}, {tB}, 7"); I(f"s_add_u32 {tA}, {tA}, {tB}"); I(f"s_add_u32 {tA}, {tA}, {WS_FF}")
        I(f"s_load_dword s69, {WSP}, {tA} glc")
    tag_setup("v31")

    I(f"s_cmp_ge_u32 {sI}, 56")
    I("s_cbranch_scc1 L_otail")
    I(f"s_cmp_lg_u32 {sWAVE}, 1")
    I("s_cbranch_scc1 L_otail")
    I(f"s_lshl_b32 {tA}, {sI}, 6"); I("v_and_b32 v8, 7, v0"); I(f"v_lshl_add_u32 v8, v8, 3, {tA}")
    I(f"global_load_dwordx2 v[28:29], v8, s[{pB1}:{pB1+1}]")
    I(f"s_lshl_b32 {tA}, {sI}, 12"); I(f"s_add_u32 {tA}, {tA}, {WS_H}")
    I(f"v_lshl_add_u32 v8, v0, 4, {tA}")
    I(f"s_lshl_b32 {tA}, {sI}, 6"); I(f"s_add_u32 {tA}, {tA}, {WS_HF}")
    I(f"s_add_u32 s18, s{pWS}, {tA}"); I(f"s_addc_u32 s19, s{pWS+1}, 0")
    I(f"s_mov_b32 {tD}, 0")
    e.label("L_hfpoll")
    I("s_load_dwordx8 s[64:71], s[18:19], 0 glc")
    I("s_waitcnt lgkmcnt(0)")
    I(f"s_xor_b32 {tA}, s64, {sT}")
    for x in range(1, 8):
        I(f"s_xor_b32 s100, s{64+x}, {sT}"); I(f"s_or_b32 {tA}, {tA}, s100")
    I(f"s_add_u32 {tD}, {tD}, 1"); I(f"s_cmp_ge_u32 {tD}, 0x80000"); I("s_cbranch_scc1 L_hfdone")
    I(f"s_cmp_eq_u32 {tA}, 0"); I("s_cbranch_scc1 L_hfdone")
    I("s_sleep 4")
    I("s_branch L_hfpoll")
    e.label("L_hfdone")
    gather([(32 + 4 * t, "v8", 1024 * t, None, "e") for t in range(4)])
    for r in range(4): I(f"v_add_f32 v{32+r}, v{32+r}, v{36+r}"); I(f"v_add_f32 v{40+r}, v{40+r}, v{44+r}")
    for r in range(4): I(f"v_add_f32 v{32+r}, v{32+r}, v{40+r}")
    for r in range(4): I(f"v_mov_b32 v{36+r}, v{32+r}")
    for r in range(4): I(f"v_permlane32_swap_b32 v{32+r}, v{36+r}")
    for r in range(4): I(f"v_add_f32 v{32+r}, v{32+r}, v{36+r}")
    round4(32, 36)
    I("v_lshlrev_b32 v36, 16, v28"); I("v_and_b32 v37, 0xffff0000, v28"); I("v_lshlrev_b32 v38, 16, v29"); I("v_and_b32 v39, 0xffff0000, v29")
    for r in range(4): I(f"v_add_f32 v{32+r}, v{32+r}, v{36+r}")
    round4(32, 36)
    c0 = -2.0 * math.sqrt(2.0 / math.pi) * math.log2(math.e)
    c1 = c0 * 0.044715
    I(f"s_mov_b32 {tA}, {f2u(c1):#x}"); I(f"v_mov_b32 v40, {f2u(c0):#x}")
    for r in range(4): I(f"v_mul_f32 v{36+r}, v{32+r}, v{32+r}")
    for r in range(4): I(f"v_fma_f32 v{36+r}, v{36+r}, {tA}, v40")
    for r in range(4): I(f"v_mul_f32 v{36+r}, v{36+r}, v{32+r}")
    for r in range(4): I(f"v_exp_f32 v{36+r}, v{36+r}")
    for r in range(4): I(f"v_add_f32 v{36+r}, 1.0, v{36+r}")
    for r in range(4): I(f"v_rcp_f32 v{36+r}, v{36+r}")
    for r in range(4): I(f"v_mul_f32 v{32+r}, v{32+r}, v{36+r}")
    for r in range(4): I(f"v_cvt_pk_bf16_f32 v{32+r}, v{32+r}, v{32+r}")
    I("v_bfe_u32 v8, v0, 3, 2"); I("v_lshlrev_b32 v8, 7, v8")
    I("v_and_b32 v9, 1, v0"); I("v_lshl_add_u32 v8, v9, 6, v8")
    I("v_bfe_u32 v9, v0, 1, 2"); I("v_lshl_add_u32 v8, v9, 2, v8"); I(f"v_add_u32 v8, {LDS_HP}, v8")
    I("ds_write2_b32 v8, v32, v33 offset0:0 offset1:4")
    I("ds_write2_b32 v8, v34, v35 offset0:8 offset1:12")
    flag_inc(F_HP)
    e.label("L_otail")
    I(f"s_lshl_b32 {tA}, {sWAVE}, 3"); I(f"s_add_u32 {tA}, {tA}, {sKVH}"); I(f"s_lshl_b32 {tA}, {tA}, 3"); I(f"s_add_u32 {tA}, {tA}, {sSP}")
    I(f"s_lshl_b32 {tB}, {tA}, 11"); I(f"s_add_u32 {tB}, {tB}, {WS_O}")
    I(f"v_lshl_add_u32 v10, v0, 4, {tB}")
    I(f"s_lshl_b32 {tB}, {tA}, 7"); I(f"s_add_u32 {tB}, {tB}, {WS_OS}")
    I(f"v_lshl_add_u32 v11, v2, 4, {tB}")
    I("v_and_b32 v16, 7, v0"); I(f"v_lshl_add_u32 v16, v16, 4, {tB}")
    I("v_and_b32 v12, 1, v1"); I("v_lshlrev_b32 v12, 7, v12"); I("v_lshrrev_b32 v13, 1, v1"); I("v_lshl_add_u32 v12, v13, 2, v12")
    I(f"s_lshl_b32 {tA}, {sWAVE}, 8"); I(f"s_add_u32 {tA}, {tA}, {LDS_O}")
    I(f"v_add_u32 v12, {tA}, v12")
    I("v_and_b32 v3, 1, v0")
    I("v_lshlrev_b32 v15, 4, v3"); I(f"v_add_u32 v15, {LDS_G}, v15")
    if warm & 2:
        I(f"global_load_dwordx4 v[32:35], v10, {WSP} sc1")
        I(f"global_load_dwordx4 v[36:39], v10, {WSP} offset:1024 sc1")
        I(f"global_load_dwordx4 v[40:43], v11, {WSP} sc1")
        I(f"global_load_dwordx4 v[44:47], v11, {WSP} offset:64 sc1")
        I(f"s_lshl_b32 {tA}, s2, 11"); I(f"s_add_u32 {tA}, {tA}, {WS_F}")
        I(f"v_lshl_add_u32 v14, v0, 4, {tA}")
        I(f"global_load_dwordx4 v[48:51], v14, {WSP} sc1")
        I(f"global_load_dwordx4 v[52:55], v14, {WSP} offset:1024 sc1")
        I(f"s_lshl_b32 {tA}, s2, 8"); I(f"s_add_u32 {tA}, {tA}, {WS_FF}")
        I(f"v_lshl_add_u32 v14, v0, 2, {tA}")
        I(f"global_load_dword v56, v14, {WSP} sc1")
    I(f"s_lshl_b32 {tA}, {sWAVE}, 2"); I(f"v_add_u32 v9, {tA}, {vFLG}")
    flag_wait(F_OP, 8)
    stamp(15)
    if oflag and spoll:
        I(f"v_readfirstlane_b32 {tA}, v11")
        I(f"s_add_u32 s18, s{pWS}, {tA}"); I(f"s_addc_u32 s19, s{pWS+1}, 0")
        I("s_mov_b32 s59, 0")
        lp = L("of"); dn = L("ofd")
        e.label(lp)
        I("s_load_dwordx16 s[64:79], s[18:19], 0 glc")
        I("s_load_dwordx16 s[80:95], s[18:19], 64 glc")
        I("s_waitcnt lgkmcnt(0)")
        I("s_mov_b32 s58, 0")
        for p in range(8):
            I(f"s_cmp_eq_u32 s{65+4*p}, {sT}"); I("s_addc_u32 s58, s58, 0")
        I("s_add_u32 s59, s59, 1"); I("s_cmp_ge_u32 s59, 0x80000"); I(f"s_cbranch_scc1 {dn}")
        I(f"s_cmp_lt_u32 s58, {oflag}")
        if psleep:
            I(f"s_cbranch_scc0 {dn}"); I(f"s_sleep {psleep}"); I(f"s_branch {lp}")
        else:
            I(f"s_cbranch_scc1 {lp}")
        e.label(dn)
    elif oflag:
        I("s_mov_b32 s59, 0")
        lp = L("of"); dn = L("ofd")
        e.label(lp)
        I("s_mov_b64 exec, 0xff")
        I(f"global_load_dwordx4 v[20:23], v16, {WSP} sc1")
        I("s_waitcnt vmcnt(0)")
        I(f"v_cmp_eq_u32 vcc, {sT}, v21")
        I("s_mov_b64 exec, -1")
        I("s_bcnt1_i32_b64 s58, vcc")
        I("s_add_u32 s59, s59, 1"); I("s_cmp_ge_u32 s59, 0x40000"); I(f"s_cbranch_scc1 {dn}")
        I(f"s_cmp_lt_u32 s58, {oflag}")
        if psleep:
            I(f"s_cbranch_scc0 {dn}"); I(f"s_sleep {psleep}"); I(f"s_branch {lp}")
        else:
            I(f"s_cbranch_scc1 {lp}")
        e.label(dn)
    stamp(10)
    gather([(32, "v10", 0, None, "e"), (36, "v10", 1024, None, "e"), (40, "v11", 0, None, "t"), (44, "v11", 64, None, "t")])
    stamp(11)

    I("v_max_f32 v16, v40, v44")
    allreduce_rows("v16", "v17", "v_max_f32")
    I("v_sub_f32 v40, v40, v16"); I("v_sub_f32 v44, v44, v16")
    I(f"v_mul_f32 v40, {LOG2E}, v40"); I(f"v_mul_f32 v44, {LOG2E}, v44")
    I("v_exp_f32 v40, v40"); I("v_exp_f32 v44, v44")
    I("v_mul_f32 v20, v40, v42")
    for r in range(4): I(f"v_mul_f32 v{16+r}, v40, v{32+r}")
    I("v_fmac_f32 v20, v44, v46")
    for r in range(4): I(f"v_fmac_f32 v{16+r}, v44, v{36+r}")
    allreduce_rows([f"v{16+r}" for r in range(5)], [f"v{32+r}" for r in range(5)], "v_add_f32")
    I("v_rcp_f32 v20, v20")
    for r in range(4): I(f"v_mul_f32 v{16+r}, v{16+r}, v20")
    for r in range(4): I(f"v_cvt_pk_bf16_f32 v{16+r}, v{16+r}, v{16+r}")
    I("ds_write2_b32 v12, v16, v17 offset0:0 offset1:8")
    I("ds_write2_b32 v12, v18, v19 offset0:16 offset1:24")
    if pbo:
        I("s_waitcnt lgkmcnt(0)")
        masked(["1"], [f"ds_add_u32 v9, {vONE} offset:64"])
    else:
        flag_inc(F_O)
    stamp(12)
    I(f"s_lshr_b32 {tC}, {sI}, 2"); I(f"s_xor_b32 {tA}, {tC}, {sI}"); I(f"s_and_b32 {tA}, {tA}, 3")
    I(f"s_cmp_lg_u32 {tA}, 0")
    I("s_cbranch_scc1 L_dbg_exit")
    I(f"s_lshl_b32 {tA}, {sB}, 4"); I(f"s_add_u32 {tA}, {tA}, {tC}"); I(f"s_lshl_b32 {tA}, {tA}, 13")
    I(f"s_lshl_b32 {tD}, {sWAVE}, 11"); I(f"s_add_u32 {tA}, {tA}, {tD}"); I(f"s_add_u32 {tA}, {tA}, {WS_F}")
    I(f"v_lshl_add_u32 v14, v0, 4, {tA}")
    I(f"v_add_u32 v13, {WS_Z-WS_F}, v14")
    I("v_and_b32 v3, 7, v0"); I("v_lshlrev_b32 v15, 4, v3")
    I(f"s_lshl_b32 {tA}, {sWAVE}, 7"); I(f"s_add_u32 {tA}, {tA}, {LDS_ZP}")
    I(f"v_add_u32 v12, {tA}, v15")
    I(f"v_add_u32 v15, {LDS_G}, v15")
    for r in range(36, 40): I(f"v_mov_b32 v{r}, 0")
    I(f"s_cmp_lt_u32 {sWAVE}, 3"); I("s_cselect_b64 s[40:41], -1, 0")
    if zgate: flag_wait(F_VI, zgate)
    gather([(32, "v13", 0, None, "e"), (36, "v13", 1024, "s[40:41]", "e")])
    for r in range(4): I(f"v_add_f32 v{32+r}, v{32+r}, v{36+r}")
    reduce_mod8(32, 36)
    I("ds_write_b128 v12, v[32:35]")
    flag_inc(F_Z)
    I(f"s_cmp_lg_u32 {sWAVE}, 1")
    I("s_cbranch_scc1 L_fg")
    flag_wait(F_Z, 4)
    for k in range(4): I(f"ds_read_b128 v[{32+4*k}:{35+4*k}], v15 offset:{128+128*k}")
    I("s_waitcnt lgkmcnt(0)")
    for r in range(4): I(f"v_add_f32 v{32+r}, v{32+r}, v{36+r}"); I(f"v_add_f32 v{40+r}, v{40+r}, v{44+r}")
    for r in range(4): I(f"v_add_f32 v{32+r}, v{32+r}, v{40+r}")
    round4(32, 36)
    I("v_lshlrev_b32 v36, 16, v152"); I("v_and_b32 v37, 0xffff0000, v152"); I("v_lshlrev_b32 v38, 16, v153"); I("v_and_b32 v39, 0xffff0000, v153")
    for r in range(4): I(f"v_add_f32 v{32+r}, v{32+r}, v{36+r}")
    round4(32, 36)
    for r in range(4): I(f"v_mul_f32 v{36+r}, 0xbfb8aa3b, v{32+r}")
    for r in range(4): I(f"v_exp_f32 v{36+r}, v{36+r}")
    for r in range(4): I(f"v_add_f32 v{36+r}, 1.0, v{36+r}")
    for r in range(4): I(f"v_rcp_f32 v{36+r}, v{36+r}")
    for r in range(4): I(f"v_mul_f32 v{32+r}, v{32+r}, v{36+r}")
    round4(32, 36)
    I("ds_write_b128 v15, v[32:35]")
    e.label("L_fg")
    gather([(32, "v14", 0, None, "e"), (36, "v14", 1024, None, "e")])
    stamp(13)
    for r in range(4): I(f"v_add_f32 v{32+r}, v{32+r}, v{36+r}")
    reduce_mod8(32, 36)
    I("ds_write_b128 v12, v[32:35] offset:512")
    flag_inc(F_F)
    I(f"s_cmp_lg_u32 {sWAVE}, 0")
    I("s_cbranch_scc1 L_dbg_exit")
    I("v_lshlrev_b32 v52, 16, v150"); I("v_and_b32 v53, 0xffff0000, v150"); I("v_lshlrev_b32 v54, 16, v151"); I("v_and_b32 v55, 0xffff0000, v151")
    e.label("L_ffw")
    I(f"ds_read_b32 {vTMPF}, {vFLG} offset:{4*F_F}")
    for k in range(1, 4): I(f"ds_read_b128 v[{32+4*k}:{35+4*k}], v15 offset:{640+128*k}")
    I("ds_read_b128 v[48:51], v15")
    I("s_waitcnt lgkmcnt(4)")
    I(f"v_readfirstlane_b32 s100, {vTMPF}")
    I("s_cmp_lt_u32 s100, 4")
    I("s_cbranch_scc1 L_ffw")
    I("s_waitcnt lgkmcnt(1)")
    for r in range(4): I(f"v_add_f32 v{32+r}, v{32+r}, v{36+r}"); I(f"v_add_f32 v{40+r}, v{40+r}, v{44+r}")
    for r in range(4): I(f"v_add_f32 v{32+r}, v{32+r}, v{40+r}")
    round4(32, 36)
    I("s_waitcnt lgkmcnt(0)")
    for r in range(4): I(f"v_mul_f32 v{32+r}, v{32+r}, v{48+r}")
    round4(32, 36)
    for r in range(4): I(f"v_add_f32 v{32+r}, v{52+r}, v{32+r}")
    I("v_cvt_pk_bf16_f32 v32, v32, v33"); I("v_cvt_pk_bf16_f32 v33, v34, v35")
    I("s_mov_b64 exec, 0xff")
    I(f"global_store_dwordx2 v154, v[32:33], s[{pOUT}:{pOUT+1}]")
    I("s_mov_b64 exec, -1")
    I("s_cmp_lg_u32 s2, 0")
    I("s_cbranch_scc1 L_h0_end")
    I("v_mov_b32 v8, 0"); I(f"v_mov_b32 v9, {sT}")
    I("s_mov_b64 exec, 1")
    I(f"global_store_dword v8, v9, {WSP}")
    I("s_mov_b64 exec, -1")
    e.label("L_h0_end")
    stamp(14)
    e.label("L_dbg_exit")
    dump_stamps()
    I("s_endpgm")

    e.label("L_worker")
    I("s_setprio 1")
    sW = "s40"
    I(f"s_sub_u32 {sW}, {sWAVE}, 4")
    if warm & 1: I(f"s_load_dword s77, {WSP}, 0")
    I("v_lshrrev_b32 v14, 3, v0"); I("v_and_b32 v15, 7, v0")
    I(f"s_mul_i32 {tA}, s2, 9363"); I(f"s_lshr_b32 {tA}, {tA}, 18")
    I(f"s_mul_i32 {tB}, {tA}, 28"); I(f"s_sub_u32 {tB}, s2, {tB}")
    I(f"s_lshl_b32 {tA}, {tA}, 3"); I(f"s_add_u32 {tA}, {tA}, {sW}"); I(f"s_mul_i32 {tA}, {tA}, {8*3584}")
    I(f"s_lshl_b32 {tB}, {tB}, 7"); I(f"s_add_u32 {tA}, {tA}, {tB}")
    I("s_cmp_lt_u32 s2, 224"); I(f"s_cselect_b32 {tA}, {tA}, 0"); I(f"s_cselect_b32 {tB}, {7*3584+128}, 0")
    srd(64, pW1, tA, tB)
    I("v_mul_u32_u24 v12, 3584, v14"); I("v_lshl_add_u32 v12, v15, 4, v12")
    I(f"s_lshl_b32 s76, {sW}, 10")
    def setup_K():
        I(f"s_lshl_b32 {tA}, {sB}, 24"); I(f"s_lshl_b32 {tB}, {sKVH}, 21"); I(f"s_add_u32 {tA}, {tA}, {tB}")
        I(f"s_lshl_b32 {tB}, {sSP}, 16"); I(f"s_add_u32 {tA}, {tA}, {tB}")
        I(f"s_lshl_b32 s41, {sW}, 13"); I(f"s_add_u32 {tA}, {tA}, s41"); I(f"s_add_u32 {tA}, {tA}, {6144*256}")
        srd(36, pK, tA, 8192)
        srd(44 + 8, pV, tA, 8192)
        I("v_xor_b32 v3, v1, v2")
        I("v_lshlrev_b32 v8, 8, v2"); I("v_lshl_add_u32 v8, v3, 4, v8")
        I(f"s_add_u32 s79, {sSP}, {sW}"); I("s_and_b32 s79, s79, 7")
        I(f"s_and_b32 {tA}, s79, 3"); I(f"s_lshl_b32 {tA}, {tA}, 6")
        I(f"v_xor_b32 v8, {tA}, v8")
        I("v_xor_b32 v9, 64, v8"); I("v_xor_b32 v10, 0x80, v8"); I("v_xor_b32 v11, 0xc0, v8")
        I("s_lshl_b32 s79, s79, 10"); I(f"s_lshl_b32 s78, {sRHO}, 8")
    def setup_rest():
        I(f"s_lshl_b32 {tA}, {sI}, 15"); I(f"s_lshr_b32 {tB}, {sW}, 1"); I(f"s_lshl_b32 {tB}, {tB}, 13"); I(f"s_add_u32 {tA}, {tA}, {tB}")
        I(f"s_lshl_b32 {tB}, {sB}, 8"); I(f"s_add_u32 {tA}, {tA}, {tB}")
        I(f"s_and_b32 {tC}, {sW}, 1"); I(f"s_lshl_b32 {tC}, {tC}, 7"); I(f"s_add_u32 {tA}, {tA}, {tC}")
        I(f"s_cmp_lt_u32 {sI}, 56"); I(f"s_cselect_b32 {tA}, {tA}, 0"); I(f"s_cselect_b32 {tD}, {7*1024+128}, 0")
        srd(68, pW2, tA, tD)
        I("v_lshlrev_b32 v165, 10, v14"); I("v_lshl_add_u32 v165, v15, 4, v165")
        I(f"s_lshl_b32 {tA}, {sKVH}, 19"); I(f"s_lshl_b32 {tD}, {sSP}, 16"); I(f"s_add_u32 {tA}, {tA}, {tD}")
        I(f"s_lshl_b32 {tD}, {sW}, 13"); I(f"s_add_u32 {tA}, {tA}, {tD}"); I(f"s_add_u32 {tA}, {tA}, {tB}")
        srd(72, pWO, tA, 7 * 1024 + 256)
        I("v_lshlrev_b32 v4, 10, v2"); I("v_lshl_add_u32 v4, v1, 4, v4")
    VV, VWO, VA = 32, 64, 96
    def ld_K(t):
        I(f"s_xor_b32 {tA}, s79, {1024*t}")
        I(f"s_add_u32 m0, s41, {tA}")
        I(f"buffer_load_dwordx4 v{8+(t&3)}, s[36:39], {tA} offen nt lds")
    def ld_A(t):
        I(f"s_add_u32 m0, s76, {LDS_W1}")
        I("buffer_load_dwordx4 v12, s[64:67], 0 offen nt lds")
    def ld_B(t):
        I(f"s_add_u32 m0, s76, {LDS_W2}")
        I("buffer_load_dwordx4 v165, s[68:71], 0 offen nt lds")
    def ld_O(hf):
        I(f"s_add_u32 m0, s76, {LDS_WO + 8192*hf}")
        I(f"s_movk_i32 {tA}, {128*hf}")
        I(f"buffer_load_dwordx4 v165, s[72:75], {tA} offen nt lds")
    def ld_V(j):
        T, r = j // 4, j % 4
        I(f"s_xor_b32 {tA}, s78, {4096*T+256*r}")
        I(f"buffer_load_dwordx4 v[{VV+4*j}:{VV+4*j+3}], v4, s[52:55], {tA} offen nt")
    def setup_tail():
        make_masks(8, "v1", "v3")
        I(f"s_lshl_b32 {tA}, {sW}, 11"); I(f"s_add_u32 {tA}, {tA}, {LDS_OP}")
        I("v_lshrrev_b32 v3, 1, v2"); I("v_lshlrev_b32 v12, 9, v3"); I("v_lshl_add_u32 v12, v1, 5, v12")
        I("v_and_b32 v3, 1, v2"); I("v_lshl_add_u32 v12, v3, 4, v12"); I(f"v_add_u32 v12, {tA}, v12")
        I(f"s_lshr_b32 {tB}, {sW}, 1"); I(f"s_lshl_b32 {tA}, {tB}, 8"); I(f"s_add_u32 {tA}, {tA}, {LDS_O}")
        I(f"v_lshl_add_u32 v29, v14, 5, {tA}")
        I(f"s_lshl_b32 {tA}, {sW}, 8"); I(f"s_add_u32 {tA}, {tA}, {LDS_OP}")
        I(f"v_lshl_add_u32 v14, v1, 4, {tA}")
        if ored2: I("v_lshl_add_u32 v14, v2, 12, v14")
        I("v_lshrrev_b32 v3, 3, v1"); I("v_lshlrev_b32 v13, 10, v3"); I("v_lshl_add_u32 v13, v2, 4, v13")
        I(f"s_lshl_b32 {tA}, {sW}, 7"); I(f"s_add_u32 {tA}, {tA}, {LDS_P}")
        I(f"v_add_u32 v13, {tA}, v13")
        I(f"s_lshl_b32 {tA}, {tB}, 4"); I(f"s_add_u32 {tA}, {tA}, {LDS_MX}")
        I(f"v_mov_b32 v15, {tA}")
        I(f"s_lshl_b32 {tA}, {sB}, 3"); I(f"s_add_u32 {tA}, {tA}, {sKVH}"); I(f"s_lshl_b32 {tA}, {tA}, 3"); I(f"s_add_u32 {tA}, {tA}, {sW}")
        I(f"s_lshl_b32 {tA}, {tA}, 3"); I(f"s_add_u32 {tA}, {tA}, {sSP}")
        I(f"s_lshl_b32 {tC}, {tA}, 8"); I(f"s_add_u32 {tC}, {tC}, {WS_O}")
        I(f"v_lshl_add_u32 v24, v1, 4, {tC}")
        if eflag:
            I(f"s_lshl_b32 {tC}, {sB}, 3"); I(f"s_add_u32 {tC}, {tC}, {sKVH}"); I(f"s_lshl_b32 {tC}, {tC}, 10")
            I(f"s_lshl_b32 {tD}, {sSP}, 4"); I(f"s_add_u32 {tC}, {tC}, {tD}"); I(f"s_add_u32 {tC}, {tC}, {WS_OS}")
            I("v_and_b32 v3, 7, v0"); I(f"v_lshl_add_u32 v25, v3, 7, {tC}")
            I("v_lshrrev_b32 v3, 1, v3"); I("v_lshlrev_b32 v27, 4, v3"); I(f"v_add_u32 v27, {LDS_MX}, v27")
        else:
            I(f"s_lshl_b32 {tC}, {tA}, 4"); I(f"s_add_u32 {tC}, {tC}, {WS_OS}")
            I(f"v_mov_b32 v25, {tC}")
        I(f"s_lshl_b32 {tA}, {tB}, 4"); I(f"s_lshl_b32 {tC}, {sB}, 2"); I(f"s_add_u32 {tA}, {tA}, {tC}")
        I(f"s_and_b32 {tC}, {sW}, 1"); I(f"s_lshl_b32 {tD}, {tC}, 1"); I(f"s_add_u32 {tA}, {tA}, {tD}")
        I(f"s_lshl_b32 {tD}, {tA}, 13"); I(f"s_lshl_b32 {tB}, {sI}, 7"); I(f"s_add_u32 {tD}, {tD}, {tB}"); I(f"s_add_u32 {tD}, {tD}, {WS_F}")
        eta_addr("v26", "v3", tD)
        I(f"s_lshl_b32 {tC}, {tC}, 13"); I(f"s_add_u32 {tC}, {tC}, {LDS_WO}")
        I(f"v_lshl_add_u32 v28, v0, 4, {tC}")
    seq = []
    cnt = dict(K=0, A=0, B=0, V=0, O=0)
    for ch in order:
        seq.append((ch, cnt[ch])); cnt[ch] += 1
    last = {c: max([i for i, x in enumerate(seq) if x[0] == c] + [-1]) for c in "KABOV"}
    firstK = min(i for i, x in enumerate(seq) if x[0] == "K")
    firstR = min(i for i, x in enumerate(seq) if x[0] in "BOV")
    lastNV = max(last[c] for c in "KA")
    win = [wfun(k) if wfun else W for k in range(len(seq))]
    done_upto = -1
    flagged = set()
    nextra = 0
    for k, (ch, t) in enumerate(seq):
        if k == firstK: setup_K()
        if k == 3 and latebar: I("s_barrier")
        if k == min(max(3, firstK + 1), firstR): setup_rest()
        need = k - win[k]
        if need > done_upto:
            I(f"s_waitcnt vmcnt({k - 1 - need})")
            done_upto = need
        for c, f, st in (("A", F_A, None), ("K", F_K, 1)):
            if c not in flagged and done_upto >= last[c]:
                flagged.add(c)
                flag_inc(f, wait=False)
                if st: stamp(st)
        dict(K=ld_K, A=ld_A, B=ld_B, V=ld_V, O=ld_O)[ch](t)
        if k == lastNV: setup_tail()
    assert len(flagged) == 2, flagged
    stamp(3)
    if dbg:
        I("s_waitcnt vmcnt(0)"); stamp(5)
        I("s_branch L_dbg_exit")
    flag_wait(F_P, 4)
    stamp(4)
    VP = 160
    I(f"ds_read_b32 v3, {vFLG} offset:60")
    I("ds_read_b128 v[16:19], v13"); I("ds_read_b128 v[20:23], v13 offset:2048")
    I(f"ds_read_b128 v[{VP}:{VP+3}], v13 offset:64")
    def abuild(j, hs, p):
        for i in range(4):
            I(f"v_and_b32 v{VA+4*(2*j+hs)+i}, v{p}, v{8+i}")
    def pv(j):
        for hs in range(2):
            acc = 16 + 4 * hs
            ar = VA + 4 * (2 * j + hs)
            I(f"v_mfma_f32_16x16x32_bf16 v[{acc}:{acc+3}], v[{ar}:{ar+3}], v[{VV+4*j}:{VV+4*j+3}], {'0' if j == 0 else f'v[{acc}:{acc+3}]'}")
    I("s_waitcnt lgkmcnt(1)")
    I(f"v_readfirstlane_b32 {sT}, v3")
    for j in range(4):
        abuild(j, 0, 16 + j)
    I(f"ds_read_b128 v[16:19], v13 offset:{2048+64}")
    for j in range(4):
        abuild(j, 1, 20 + j)
    I("s_waitcnt lgkmcnt(1)")
    for j in range(4): abuild(4 + j, 0, VP + j)
    I(f"ds_read_b128 v[{VP}:{VP+3}], v15"); I(f"ds_read_b128 v[20:23], v15 offset:{LDS_L-LDS_MX}")
    I("s_waitcnt lgkmcnt(2)")
    for j in range(4): abuild(4 + j, 1, 16 + j)
    tag_setup("v164")
    I("s_waitcnt lgkmcnt(0)")
    I(f"v_max3_f32 v30, v{VP}, v{VP+1}, v{VP+2}"); I(f"v_max_f32 v30, v30, v{VP+3}")
    for k in range(4): I(f"v_sub_f32 v{VP+k}, v{VP+k}, v30")
    for k in range(4): I(f"v_mul_f32 v{VP+k}, {LOG2E}, v{VP+k}")
    for k in range(4): I(f"v_exp_f32 v{VP+k}, v{VP+k}")
    I(f"v_mul_f32 v31, v{VP}, v20")
    for k in range(1, 4): I(f"v_fmac_f32 v31, v{VP+k}, v{20+k}")
    if ored2:
        for k in range(1, 4):
            I(f"v_cmp_eq_u32 vcc, {k}, v2")
            I(f"v_cndmask_b32 v{VP}, v{VP}, v{VP+k}, vcc")
    if eflag:
        I("ds_read_b128 v[68:71], v27"); I(f"ds_read_b128 v[72:75], v27 offset:{LDS_L-LDS_MX}")
        I("s_waitcnt lgkmcnt(0)")
        I("v_max3_f32 v64, v68, v69, v70"); I("v_max_f32 v64, v64, v71")
        for k in range(4): I(f"v_sub_f32 v{68+k}, v{68+k}, v64")
        for k in range(4): I(f"v_mul_f32 v{68+k}, {LOG2E}, v{68+k}")
        for k in range(4): I(f"v_exp_f32 v{68+k}, v{68+k}")
        I("v_mul_f32 v66, v68, v72")
        for k in range(1, 4): I(f"v_fmac_f32 v66, v{68+k}, v{72+k}")
        I(f"v_mov_b32 v65, {sT}"); I(f"v_mov_b32 v67, {sT}")
    I("s_setprio 2")
    vpos = [i for i, x in enumerate(seq) if x[0] == "V"]
    npost = 0
    for j in range(8):
        I(f"s_waitcnt vmcnt({len(seq)-1-vpos[j]+npost})")
        if j == 7: pv(j)
        if j >= 8 - len(post):
            ch = post[npost]
            dict(B=ld_B, O=ld_O)[ch](cnt[ch]); cnt[ch] += 1
            npost += 1
        if j != 7: pv(j)
    assert cnt["O"] == 2 and cnt["B"] == 1
    stamp(5)
    I("ds_write_b128 v12, v[16:19]"); I("ds_write_b128 v12, v[20:23] offset:1024")
    if eflag:
        I("s_waitcnt lgkmcnt(0)")
        I("s_mov_b64 exec, 1")
        I(f"ds_add_rtn_u32 {vTMPF}, {vFLG}, {vONE} offset:{4*F_OP}")
        I("s_mov_b64 exec, -1")
        I("s_waitcnt lgkmcnt(0)")
        I(f"v_readfirstlane_b32 s100, {vTMPF}")
        I("s_cmp_lg_u32 s100, 7")
        I("s_cbranch_scc1 L_notlast")
        I("s_mov_b64 exec, 0xff")
        I(f"global_store_dwordx4 v25, v[64:67], {WSP} sc1")
        I("s_mov_b64 exec, -1")
        e.label("L_notlast")
    else:
        flag_inc(F_OP)
        I(f"v_mov_b32 v21, {sT}"); I(f"v_mov_b32 v23, {sT}"); I("v_mov_b32 v20, v30"); I("v_mov_b32 v22, v31")
    if ored2:
        lp = L("op")
        e.label(lp)
        I(f"ds_read_b32 {vTMPF}, {vFLG} offset:{4*F_OP}")
        I(f"ds_read_b128 v[{VA}:{VA+3}], v14"); I(f"ds_read_b128 v[{VA+4}:{VA+7}], v14 offset:2048")
        I("s_waitcnt lgkmcnt(2)")
        I(f"v_readfirstlane_b32 s100, {vTMPF}")
        I("s_cmp_lt_u32 s100, 8")
        I(f"s_cbranch_scc1 {lp}")
        I("s_waitcnt lgkmcnt(0)")
        for r in range(4): I(f"v_add_f32 v{16+r}, v{VA+r}, v{VA+4+r}")
        for r in range(4): I(f"v_mul_f32 v{16+r}, v{VP}, v{16+r}")
        allreduce_rows([f"v{16+r}" for r in range(4)], [f"v{VA+r}" for r in range(4)], "v_add_f32")
    else:
        flag_wait(F_OP, 8)
        for wv in range(8):
            I(f"ds_read_b128 v[{VA+4*wv}:{VA+4*wv+3}], v14 offset:{2048*wv}")
        for k in range(4):
            I(f"s_waitcnt lgkmcnt({6-2*k})")
            a = VA + 8 * k
            for r in range(4): I(f"v_add_f32 v{a+r}, v{a+r}, v{a+4+r}")
            for r in range(4):
                if k == 0: I(f"v_mul_f32 v{16+r}, v{VP}, v{a+r}")
                else: I(f"v_fmac_f32 v{16+r}, v{VP+k}, v{a+r}")
    tag_embed(16, "v164")
    I("s_mov_b64 exec, 0xffff")
    I(f"global_store_dwordx4 v24, v[16:19], {WSP} sc1")
    if not eflag:
        I("s_mov_b64 exec, 1")
        I(f"global_store_dwordx4 v25, v[20:23], {WSP} sc1")
    I("s_mov_b64 exec, -1")
    stamp(6)
    if eflag:
        I("s_waitcnt vmcnt(1)")
    else:
        I("s_waitcnt vmcnt(2)")
    flag_inc(F_W, wait=False)
    I(f"v_add_u32 v12, {WS_Z-WS_F}, v26")
    I(f"s_and_b32 {tA}, {sW}, 1"); I(f"s_lshl_b32 {tA}, {tA}, 10"); I(f"s_add_u32 {tA}, {tA}, {LDS_W2}")
    I(f"v_lshl_add_u32 v13, v0, 4, {tA}")
    I(f"s_lshr_b32 {tA}, {sW}, 1"); I(f"s_lshl_b32 {tA}, {tA}, 7"); I(f"s_add_u32 {tA}, {tA}, {LDS_HP}")
    I("v_lshrrev_b32 v14, 3, v0"); I(f"v_lshl_add_u32 v14, v14, 4, {tA}")
    flag_wait(F_W, 8)
    stamp(2)
    for u in range(8):
        I(f"ds_read_b128 v[{VWO+4*u}:{VWO+4*u+3}], v28 offset:{1024*u}")
    I(f"s_cmp_ge_u32 {sI}, 56")
    I("s_cbranch_scc1 L_noz")
    for t in range(4):
        I(f"ds_read_b128 v[{40+4*t}:{43+4*t}], v13 offset:{2048*t}")
    flag_wait(F_HP, 1)
    I(f"ds_read_b128 v[{VA}:{VA+3}], v14")
    I("s_waitcnt lgkmcnt(0)")
    for t in range(4):
        for i in range(4):
            I(f"v_and_b32 v{128+4*t+i}, v{VA+t}, v{8+i}")
    for t in range(4):
        I(f"v_mfma_f32_16x16x32_bf16 v[56:59], v[{128+4*t}:{131+4*t}], v[{40+4*t}:{43+4*t}], {'0' if t == 0 else 'v[56:59]'}")
    eta_publish(56, 60, "v12", 0, "v164")
    e.label("L_noz")
    stamp(8)
    if pbo:
        I(f"s_lshr_b32 {tA}, {sW}, 1"); I(f"s_lshl_b32 {tA}, {tA}, 2"); I(f"v_add_u32 v3, {tA}, {vFLG}")
        lp = L("fo")
        e.label(lp)
        I(f"ds_read_b32 {vTMPF}, v3 offset:64")
        I(f"ds_read_b128 v[{VA}:{VA+3}], v29"); I(f"ds_read_b128 v[{VA+4}:{VA+7}], v29 offset:16")
        I("s_waitcnt lgkmcnt(2)")
        I(f"v_readfirstlane_b32 s100, {vTMPF}")
        I("s_cmp_lt_u32 s100, 1")
        I(f"s_cbranch_scc1 {lp}")
    else:
        flag_wait(F_O, 4)
    stamp(7)
    if not pbo:
        I(f"ds_read_b128 v[{VA}:{VA+3}], v29"); I(f"ds_read_b128 v[{VA+4}:{VA+7}], v29 offset:16")
    I("s_waitcnt lgkmcnt(0)")
    for u in range(8):
        for i in range(4):
            I(f"v_and_b32 v{128+4*u+i}, v{VA+u}, v{8+i}")
        if u >= 1:
            uu = u - 1
            I(f"v_mfma_f32_16x16x32_bf16 v[32:35], v[{128+4*uu}:{131+4*uu}], v[{VWO+4*uu}:{VWO+4*uu+3}], {'0' if uu == 0 else 'v[32:35]'}")
    I(f"v_mfma_f32_16x16x32_bf16 v[32:35], v[156:159], v[{VWO+28}:{VWO+31}], v[32:35]")
    eta_publish(32, 36, "v26", 0, "v164")
    if fflag:
        I("s_mov_b64 exec, 0xff")
        I(f"global_store_dword v27, v21, {WSP} sc1")
        I("s_mov_b64 exec, -1")
    flag_inc(F_VI, wait=False)
    stamp(9)
    I("s_branch L_dbg_exit")
    e.label("L_end")
    I("s_endpgm")

    e.raw('.section .rodata,"a"'); e.raw(".p2align 6"); e.raw(f".amdhsa_kernel {KN}")
    e.raw("  .amdhsa_next_free_vgpr 168"); e.raw("  .amdhsa_next_free_sgpr 102"); e.raw("  .amdhsa_accum_offset 168")
    e.raw("  .amdhsa_group_segment_fixed_size 0"); e.raw("  .amdhsa_kernarg_size 104"); e.raw("  .amdhsa_user_sgpr_count 2")
    e.raw("  .amdhsa_user_sgpr_kernarg_segment_ptr 1"); e.raw("  .amdhsa_system_sgpr_workgroup_id_x 1")
    e.raw("  .amdhsa_float_denorm_mode_32 3")
    e.raw(".end_amdhsa_kernel")
    return e.text()

if __name__ == "__main__":
    base = dict(psleep=1, gsleep=0, oflag=8, fflag=0, W=3, swarm=False)
    for nm, kw in [("k57a", dict(base)),
                   ("k57b", dict(base, eflag=False)),
                   ("k57c", dict(base, psleep=0)),
                   ("k57d", dict(base, order="AKKKKKVKVKVKVVVVV")),
                   ]:
        open(f"work/{nm}m.s", "w").write(gen(stamps=2, **kw))
        open(f"work/{nm}s.s", "w").write(gen(stamps=1, **kw))
        open(f"work/{nm}.s", "w").write(gen(**kw))
```
